```python
import torch

def _softmax(x, axis=-1):
    return torch.softmax(x, dim=axis)
def _gelu(x):
    return torch.nn.functional.gelu(x, approximate="tanh")
def _silu(x):
    return torch.nn.functional.silu(x)
def _sigmoid(x):
    return torch.sigmoid(x)
def _layernorm(x, axis=-1, eps=1e-5):
    m = x.mean(dim=axis, keepdim=True)
    v = x.var(dim=axis, keepdim=True, unbiased=False)
    return (x - m) / torch.sqrt(v + eps)
def _scatter_add(tgt, idx, src, axis=0):
    return tgt.clone().index_add_(axis, idx, src)
def _segment_sum(src, seg, n):
    out = torch.zeros((n,) + src.shape[1:], dtype=src.dtype)
    return out.index_add_(0, seg, src)
def _pad(x, pw):
    flat = tuple(v for pair in reversed(pw) for v in pair)
    return torch.nn.functional.pad(x, flat)

kernel_name = 'parallel_sum__spectral_gfnet__glu_gated_swiglu__prompt'

def setup_inputs():

    _w = (lambda a: (lambda t: t.to(torch.bfloat16) if t.is_floating_point() else t)(torch.as_tensor(a)))
    def _A_setup():
        B, S, D = 1, 2048, 512
        Df = D // 2 + 1
        return {
            "x": _w((lambda *s: torch.randn(*s, dtype=torch.bfloat16) * 0.05)(B, S, D)),
            "w_r": _w((lambda *s: torch.randn(*s, dtype=torch.bfloat16) * 0.4)(S, Df) * 0.02),
            "w_i": _w((lambda *s: torch.randn(*s, dtype=torch.bfloat16) * 0.4)(S, Df) * 0.02),
        }
    _A_in = _A_setup()

    def _B_setup():
        B, S, D, F = 1, 2048, 512, 1376
        return {
            "x": _w((lambda *s: torch.randn(*s, dtype=torch.bfloat16) * 0.05)(B, S, D)),
            "w1": _w((lambda *s: torch.randn(*s, dtype=torch.bfloat16) * 0.2)(D, F) * (2.0 / D) ** 0.5),
            "w3": _w((lambda *s: torch.randn(*s, dtype=torch.bfloat16) * 0.2)(D, F) * (2.0 / D) ** 0.5),
            "w2": _w((lambda *s: torch.randn(*s, dtype=torch.bfloat16) * 0.2)(F, D) * (2.0 / F) ** 0.5),
        }
    _B_in = _B_setup()

    return {
        "A_x": _A_in["x"],
        "A_w_r": _A_in["w_r"],
        "A_w_i": _A_in["w_i"],
        "B_x": _B_in["x"],
        "B_w1": _B_in["w1"],
        "B_w3": _B_in["w3"],
        "B_w2": _B_in["w2"],
    }

def reference(A_x, A_w_r, A_w_i, B_x, B_w1, B_w3, B_w2):
    def _A_ref(x, w_r, w_i):
        B, S, D = x.shape
        X = (lambda x, axes=(-2,-1): torch.fft.rfft2(x.float(), dim=axes))(x, axes=(-2, -1))
        W = w_r + 1j * w_i
        X = X * W
        y = (lambda x, s, axes=(-2,-1): torch.fft.irfft2(x, s=s, dim=axes).to(torch.bfloat16))(X, (S, D), axes=(-2, -1))
        return y

    def _B_ref(x, w1, w3, w2):
        gate = torch.einsum("bsd,df->bsf", x, w1)
        up = torch.einsum("bsd,df->bsf", x, w3)
        h = _silu(gate) * up
        out = torch.einsum("bsf,fd->bsd", h, w2)
        return out

    x = A_x
    xn = _layernorm(x, axis=-1)
    return x + _A_ref(xn, A_w_r, A_w_i) + _B_ref(xn, B_w1, B_w3, B_w2)
```

```python
import re

TRANS = ("v_exp_f32", "v_log_f32", "v_rcp_f32", "v_rsq_f32", "v_sqrt_f32", "v_sin_f32", "v_cos_f32")
RMW = ("v_fmac_f32", "v_dot2c_f32_bf16", "v_fmac_f32_dpp")
NODST_S = ("s_cmp", "s_cbranch", "s_branch", "s_waitcnt", "s_barrier", "s_nop", "s_setprio", "s_sleep",
           "s_endpgm", "s_bitcmp")

def split_ops(rest):
    out, depth, cur = [], 0, ""
    for ch in rest:
        if ch == "[": depth += 1
        if ch == "]": depth -= 1
        if ch == "," and depth == 0:
            out.append(cur.strip()); cur = ""
        else:
            cur += ch
    if cur.strip(): out.append(cur.strip())
    return out

def regs_of(tok):
    tok = tok.strip()
    tok = tok.lstrip("-")
    if tok.startswith("abs(") or tok.startswith("|"):
        tok = tok.strip("|").replace("abs(", "").rstrip(")")
    m = re.fullmatch(r"([vs])(\d+)", tok)
    if m: return {(m.group(1), int(m.group(2)))}
    m = re.fullmatch(r"([vs])\[(\d+):(\d+)\]", tok)
    if m: return {(m.group(1), i) for i in range(int(m.group(2)), int(m.group(3)) + 1)}
    if tok in ("vcc", "exec", "m0"): return {(tok, 0)}
    if tok in ("vcc_lo", "vcc_hi"): return {("vcc", 0)}
    if tok in ("exec_lo", "exec_hi"): return {("exec", 0)}
    return set()

class Ins:
    __slots__ = ("op", "kind", "rd", "wr", "pos", "srcc", "ab", "dpp", "wide_store", "data", "lds_dma")

def parse(text):
    t = text.strip()
    parts = t.split(None, 1)
    op = parts[0]
    rest = parts[1] if len(parts) > 1 else ""
    ops = split_ops(rest)
    mods = ""
    if ops:
        last = ops[-1].split(None, 1)
        ops[-1] = last[0]
        mods = last[1] if len(last) > 1 else ""
    i = Ins()
    i.op = op; i.rd = set(); i.wr = set(); i.srcc = set(); i.ab = set(); i.dpp = False
    i.wide_store = False; i.data = set(); i.lds_dma = False
    R = [regs_of(o) for o in ops]
    if op.startswith("v_mfma"):
        i.kind = "mfma"; i.wr = R[0]; i.ab = R[1] | R[2]; i.srcc = R[3]; i.rd = i.ab | i.srcc
    elif op.startswith("v_"):
        i.kind = "valu"
        i.dpp = op.endswith("_dpp")
        if op.startswith("v_permlane"):
            i.wr = R[0] | R[1]; i.rd = R[0] | R[1]
        elif "_co_" in op:
            i.wr = R[0] | R[1]
            for r in R[2:]: i.rd |= r
        else:
            i.wr = R[0]
            for r in R[1:]: i.rd |= r
            if op in RMW: i.rd |= R[0]
    elif op.startswith("ds_"):
        i.kind = "ds"
        if op.startswith("ds_read") or op.startswith("ds_bpermute") or op.startswith("ds_swizzle"):
            i.wr = R[0]
            for r in R[1:]: i.rd |= r
        else:
            for r in R: i.rd |= r
    elif op.startswith("buffer_") or op.startswith("global_"):
        i.kind = "vmem"
        modset = mods.split()
        if "lds" in modset:
            i.lds_dma = True
            for r in R: i.rd |= r
            i.rd |= {("m0", 0)}
        elif "_load" in op:
            i.wr = R[0]
            for r in R[1:]: i.rd |= r
        else:
            for r in R: i.rd |= r
            if op.endswith("x4") or op.endswith("x3"):
                i.wide_store = True
                i.data = R[0] if op.startswith("buffer_") else R[1]
    elif op.startswith("s_load") or op.startswith("s_memtime") or op.startswith("s_memrealtime"):
        i.kind = "smem"; i.wr = R[0]
        for r in R[1:]: i.rd |= r
    elif op.startswith("s_"):
        i.kind = "salu"
        if any(op.startswith(p) for p in NODST_S):
            for r in R: i.rd |= r
        else:
            i.wr = R[0]
            for r in R[1:]: i.rd |= r
            if "saveexec" in op: i.wr |= {("exec", 0)}
    else:
        raise ValueError("unknown instruction " + text)
    return i

class Asm:
    def __init__(self):
        self.lines = []
        self.stubs = []
        self.uid = 0
        self.reset()
        self.maxv = 0
        self.maxs = 0

    def reset(self):
        self.hist = []
        self.pos = 0
        self.vm = []
        self.lg = []

    def label(self, base):
        self.uid += 1
        return f"L{base}_{self.uid}"

    def raw(self, text):
        self.lines.append(text)

    def place(self, lab):
        self.lines.append(lab + ":")

    def comment(self, c):
        self.lines.append("    ; " + c)

    def _need(self, i):
        need = 0
        isv = lambda s: {r for r in s if r[0] == "v"}
        iss = lambda s: {r for r in s if r[0] in ("s", "vcc")}
        for p in reversed(self.hist):
            dist = self.pos - p.pos - 1
            if dist > 20: break
            w = 0
            if p.kind == "valu":
                pv = isv(p.wr); ps = iss(p.wr)
                if i.kind == "mfma" and pv & i.rd: w = max(w, 3 if p.op.startswith("v_dot") else 2)
                if i.kind == "valu":
                    if p.op in TRANS and pv & i.rd: w = max(w, 1)
                    if (i.dpp or i.op.startswith("v_permlane")) and pv & i.rd: w = max(w, 2)
                    if i.op.startswith("v_read") and pv & i.rd: w = max(w, 1)
                    if ps & i.rd: w = max(w, 2)
                    if p.op.startswith("v_dot") and pv & (i.rd | i.wr):
                        if i.op != p.op: w = max(w, 3)
                        elif not (pv & i.wr): w = max(w, 3)
                if i.kind in ("ds", "vmem") and p.op.startswith("v_dot") and pv & i.rd: w = max(w, 3)
                if i.kind in ("ds", "vmem") and p.op in TRANS and pv & i.rd: w = max(w, 1)
                if i.kind == "vmem" and ps & i.rd: w = max(w, 5)
                if i.kind == "salu" and ps & i.rd and not i.op.startswith("s_cbranch"): w = max(w, 1)
            elif p.kind == "mfma":
                if i.kind == "mfma":
                    if p.wr & i.ab: w = max(w, 12)
                    if p.wr & i.srcc and p.wr != i.srcc: w = max(w, 10)
                    if p.wr & i.wr and not (p.wr == i.srcc): w = max(w, 10)
                elif i.kind in ("valu", "ds", "vmem"):
                    if p.wr & (i.rd | i.wr): w = max(w, 12)
                    if i.kind == "valu" and p.srcc & i.wr: w = max(w, 7)
            elif p.kind == "salu":
                if ("m0", 0) in p.wr and i.lds_dma: w = max(w, 1)
            elif p.kind == "vmem" and p.wide_store:
                if p.data & i.wr: w = max(w, 2)
            need = max(need, w - dist)
        return need

    def _push(self, text, i, states=1):
        self.lines.append("    " + text)
        i.pos = self.pos + states - 1
        self.pos += states
        self.hist.append(i)
        if len(self.hist) > 40: self.hist.pop(0)

    def nop(self, n):
        while n > 0:
            k = min(n, 16)
            self._push(f"s_nop {k-1}", parse("s_nop 0"), k)
            n -= k

    def wait(self, vm=None, lg=None):
        parts = []
        if vm is not None:
            vm = min(vm, 63)
            parts.append(f"vmcnt({vm})")
            while len(self.vm) > vm: self.vm.pop(0)
        if lg is not None:
            lg = min(lg, 15)
            parts.append(f"lgkmcnt({lg})")
            while len(self.lg) > lg: self.lg.pop(0)
        self._push("s_waitcnt " + " ".join(parts), parse("s_waitcnt 0"))

    def wait_tag(self, tag):
        vm = lg = None
        for q, nm in ((self.vm, "vm"), (self.lg, "lg")):
            idx = [n for n, e in enumerate(q) if e[1] == tag]
            if idx:
                cnt = len(q) - 1 - idx[-1]
                if nm == "vm": vm = cnt
                else: lg = cnt
        if vm is not None or lg is not None: self.wait(vm, lg)

    def __call__(self, text, tag=None, track=True):
        i = parse(text)
        for r in i.rd | i.wr:
            if r[0] == "v": self.maxv = max(self.maxv, r[1])
            if r[0] == "s": self.maxs = max(self.maxs, r[1])
        touched = i.rd | i.wr
        vm = lg = None
        idx = [n for n, e in enumerate(self.vm) if e[0] & touched]
        if idx: vm = len(self.vm) - 1 - idx[-1]
        idx = [n for n, e in enumerate(self.lg) if e[0] & touched]
        if idx:
            lg = len(self.lg) - 1 - idx[-1]
            if any(e[2] for e in self.lg): lg = 0
        if vm is not None or lg is not None: self.wait(vm, lg)
        n = self._need(i)
        if n > 0: self.nop(n)
        self._push(text, i)
        if track:
            if i.kind == "vmem": self.vm.append((set(i.wr), tag, False))
            elif i.kind == "ds": self.lg.append((set(i.wr), tag, False))
            elif i.kind == "smem": self.lg.append((set(i.wr), tag, True))

    def flush_stubs(self):
        self.lines += self.stubs
        self.stubs = []

    def text(self):
        return "\n".join(self.lines) + "\n"

def vr(a, n=1):
    return f"v{a}" if n == 1 else f"v[{a}:{a+n-1}]"
def sr(a, n=1):
    return f"s{a}" if n == 1 else f"s[{a}:{a+n-1}]"
def fl(x):
    import struct
    return "0x%08x" % struct.unpack("<I", struct.pack("<f", x))[0]
```

```python
import sys, math
from asmlib import Asm, vr, sr, fl

NAME = "parallel_sum__spectral_gfnet__glu_gated_swiglu__prompt"

WS_H, WS_Y1, WS_Z, WS_WT, WS_FLG, WS_DBG = 0x0, 0x600000, 0x800000, 0xA00000, 0xE00000, 0xF00000
WS_SIZE = 0x1000000
H_UNIT = 86 * 1024
F1_OFF, F2_OFF, F3_OFF, EPOCH_OFF = WS_FLG, WS_FLG + 0x1000, WS_FLG + 0x2000, WS_FLG + 0x3000

SLOT = 40992
W1B, XB, W3B = 0, 12288, 28704
SPEC = 3 * SLOT
MISC = SPEC + 33280
SY_FULL, SY_FREE, SY_SPEC, SY_STAT, SY_Y, SY_CEX = MISC, MISC + 32, MISC + 64, MISC + 80, MISC + 96, MISC + 112
STAT = MISC + 256
AEXT = STAT + 2048
RSB = AEXT + 3072
LDS_TOTAL = 163840
assert RSB + 512 <= LDS_TOTAL
W2_GS = [2, 2, 0, 0, 1, 1, 2, 2, 0]
def w2base(j): return W2_GS[j] * SLOT + (j & 1) * 20480

P_X, P_WR, P_WI, P_W1, P_W3, P_W2, P_OUT, P_DBG, P_WS = 64, 66, 68, 72, 74, 76, 78, 80, 82
S_WAVE, S_W, S_XCD, S_IDX, S_NONCE, S_ROLE, S_SPIN = 40, 41, 42, 43, 44, 45, 46
R_A, R_B, R_C, R_WS = 8, 12, 16, 20
S_T = 84
SPIN_LDS, SPIN_GLB = 200000, 60000
QP = "quad_perm:[1,0,3,2] row_mask:0xf bank_mask:0xf"
LOG2E = 1.4426950408889634

class Cfg:
    fused = False
    stamps = False
    rot = True
    prio = True

def srd(a, d, p, n):
    a(f"s_mov_b32 s{d}, s{p}")
    a(f"s_mov_b32 s{d+1}, s{p+1}")
    a(f"s_mov_b32 s{d+2}, {n}")
    a(f"s_mov_b32 s{d+3}, 0x00020000")

class K:
    def __init__(self, a, cfg, kid):
        self.a, self.cfg, self.kid = a, cfg, kid
        self.nst = 0
        self.sc = " sc1" if cfg.fused else ""

    def stamp(self):
        if not self.cfg.stamps: return
        a = self.a
        assert self.nst < 8
        a(f"s_memtime s[{S_T+2*self.nst}:{S_T+2*self.nst+1}]")
        self.nst += 1

    def stamps_out(self, tmp=0):
        if not self.cfg.stamps: return
        a = self.a
        a(f"s_memrealtime s[{S_T+16}:{S_T+17}]")
        a.wait(vm=0, lg=0)
        srd(a, R_WS, P_WS, WS_SIZE)
        a(f"s_mul_i32 s47, s2, 12")
        a(f"s_add_u32 s47, s47, s{S_WAVE}")
        a(f"s_lshl_b32 s47, s47, 6")
        a(f"s_add_u32 s47, s47, {WS_DBG + self.kid * 0x40000}")
        a(f"v_mov_b32 v{tmp}, 0")
        for i in list(range(self.nst)) + [8]:
            a(f"v_mov_b32 v{tmp+1}, s{S_T+2*i}")
            a(f"buffer_store_dword v{tmp+1}, v{tmp}, s[{R_WS}:{R_WS+3}], s47 offen offset:{4*i}")
        self.nst = 0

    def lds_pre(self, tmp, addr):
        self.a(f"ds_read_b32 v{tmp}, v{addr}")

    def lds_check(self, tmp, addr, thr, sleep=1):
        a = self.a
        st, rt, lp = a.label("st"), a.label("rt"), a.label("lp")
        a(f"v_cmp_gt_u32 vcc, {thr}, v{tmp}")
        a(f"s_cbranch_vccnz {st}")
        a.place(rt)
        a.stubs += [f"{st}:", f"    s_mov_b32 s{S_SPIN}, {SPIN_LDS}", f"{lp}:"]
        if sleep is not None: a.stubs += [f"    s_sleep {sleep}"]
        a.stubs += [f"    ds_read_b32 v{tmp}, v{addr}", "    s_waitcnt lgkmcnt(0)",
                    f"    v_cmp_gt_u32 vcc, {thr}, v{tmp}", f"    s_cbranch_vccz {rt}",
                    f"    s_sub_u32 s{S_SPIN}, s{S_SPIN}, 1", f"    s_cbranch_scc0 {lp}", f"    s_branch {rt}"]

    def lds_wait(self, tmp, addr, thr, sleep=1):
        self.lds_pre(tmp, addr)
        self.lds_check(tmp, addr, thr, sleep)

    def lds_post(self, tmp, addr, val):
        self.a(f"v_mov_b32 v{tmp}, {val}")
        self.a(f"ds_write_b32 v{addr}, v{tmp}")

    def glb_wait(self, tmp, voff):
        if not self.cfg.fused: return
        a = self.a
        lp, dn = a.label("gl"), a.label("gd")
        a(f"s_mov_b32 s{S_SPIN}, {SPIN_GLB}")
        a.place(lp)
        a(f"buffer_load_dword v{tmp}, v{voff}, s[{R_WS}:{R_WS+3}], 0 offen sc1")
        a.wait(vm=0)
        a(f"v_cmp_ne_u32 vcc, s{S_NONCE}, v{tmp}")
        a(f"s_cbranch_vccz {dn}")
        a("s_sleep 2")
        a(f"s_sub_u32 s{S_SPIN}, s{S_SPIN}, 1")
        a(f"s_cbranch_scc0 {lp}")
        a.place(dn)

    def glb_post(self, tmp, soff):
        if not self.cfg.fused: return
        a = self.a
        a(f"v_mov_b32 v{tmp}, s{S_NONCE}")
        a(f"v_mov_b32 v{tmp+1}, 0")
        a.wait(vm=0)
        a("s_mov_b64 exec, 1")
        a(f"buffer_store_dword v{tmp}, v{tmp+1}, s[{R_WS}:{R_WS+3}], s{soff} offen sc1")
        a("s_mov_b64 exec, -1")

    def nonce_load(self):
        if not self.cfg.fused: return
        a = self.a
        a(f"s_add_u32 s48, s{P_WS}, {EPOCH_OFF}")
        a(f"s_addc_u32 s49, s{P_WS+1}, 0")
        a(f"s_load_dword s{S_NONCE}, s[48:49], 0")

    def nonce_finish(self):
        if not self.cfg.fused: return
        a = self.a
        a(f"s_mul_i32 s{S_NONCE}, s{S_NONCE}, 0x9E3779B1")
        a(f"s_add_u32 s{S_NONCE}, s{S_NONCE}, 0x7F4A7C15")

    def ids_g1(self, sq, sg):
        a = self.a
        a(f"s_and_b32 s{sq}, s{S_XCD}, 1")
        a(f"s_lshl_b32 s{sq}, s{sq}, 3")
        a(f"s_and_b32 s47, s{S_IDX}, 7")
        a(f"s_add_u32 s{sq}, s{sq}, s47")
        a(f"s_lshr_b32 s{sg}, s{S_XCD}, 1")
        a(f"s_lshl_b32 s{sg}, s{sg}, 2")
        a(f"s_lshr_b32 s47, s{S_IDX}, 3")
        a(f"s_add_u32 s{sg}, s{sg}, s47")

    def ids_g2(self, srp, scb):
        a = self.a
        a(f"s_and_b32 s47, s{S_IDX}, 3")
        a(f"s_lshl2_add_u32 s{srp}, s{S_XCD}, s47")
        a(f"s_lshr_b32 s{scb}, s{S_IDX}, 2")

def loader_g1(k):
    a = k.a
    SQ, SG, SKB, SST, SSL, SX, SWO, ST = 50, 51, 52, 53, 54, 55, 56, 57
    VX0, VX1, VW, VFULL, VFREE, VT = 2, 3, 4, 7, 8, 9
    k.ids_g1(SQ, SG)
    srd(a, R_A, P_X, 2097152); srd(a, R_B, P_W1, 1409024); srd(a, R_C, P_W3, 1409024)
    a("v_lshrrev_b32 v10, 3, v0")
    a("v_lshlrev_b32 v10, 16, v10")
    a("v_and_b32 v11, 7, v0")
    a("v_lshrrev_b32 v12, 4, v0")
    a("v_xor_b32 v11, v11, v12")
    a(f"v_lshl_add_u32 v{VX0}, v11, 4, v10")
    a(f"s_lshl_b32 s47, s{SQ}, 1")
    a(f"s_add_u32 s47, s47, s{S_W}")
    a(f"s_lshl_b32 s47, s47, 11")
    a(f"v_add_u32 v{VX0}, s47, v{VX0}")
    a(f"v_xor_b32 v{VX1}, 64, v{VX0}")
    a("s_mov_b32 s48, 0x15555556")
    a("s_movk_i32 s49, 2752")
    a(f"s_mul_i32 s47, s{SG}, 192")
    a(f"s_mul_i32 s{ST}, s{S_W}, {32*2752}")
    a(f"s_add_u32 s47, s47, s{ST}")
    for j in range(3):
        a(f"v_add_u32 v10, {64*j}, v0")
        a("v_mul_hi_u32 v11, v10, s48")
        a("v_mul_u32_u24 v12, 12, v11")
        a("v_sub_u32 v12, v10, v12")
        a("v_mul_lo_u32 v11, v11, s49")
        a(f"v_lshl_add_u32 v{VW+j}, v12, 4, v11")
        a(f"v_add_u32 v{VW+j}, s47, v{VW+j}")
    if k.cfg.rot:
        a(f"s_lshr_b32 s47, s{S_IDX}, 3")
        a(f"s_lshl1_add_u32 s{SKB}, s47, s{S_IDX}")
        a(f"s_and_b32 s{SKB}, s{SKB}, 7")
    else:
        a(f"s_mov_b32 s{SKB}, 0")
    a(f"s_mov_b32 s{SST}, 0")
    a(f"s_mov_b32 s{SSL}, 0")
    lp, nofree, nopub, nobar = a.label("ld"), a.label("nf"), a.label("np"), a.label("nb")
    a.place(lp)
    a(f"s_cmp_lt_u32 s{SST}, 3")
    a(f"s_cbranch_scc1 {nofree}")
    a(f"s_sub_u32 s47, s{SST}, 2")
    k.lds_wait(VT, VFREE, "s47")
    a.place(nofree)
    a(f"s_lshl_b32 s{SX}, s{SKB}, 7")
    a(f"s_mul_i32 s{SWO}, s{SKB}, {64*2752}")
    a(f"s_lshl_b32 s48, s{S_W}, 13")
    a(f"s_add_u32 s48, s48, s{SSL}")
    a(f"s_mul_i32 s49, s{S_W}, 6144")
    a(f"s_add_u32 s49, s49, s{SSL}")
    def xi(i):
        a(f"s_add_u32 m0, s48, {XB + i*1024}")
        a(f"s_add_u32 s{ST}, s{SX}, {(i & 3)*8*65536 + (i >> 2)*1024}")
        a(f"buffer_load_dwordx4 v{VX1 if i & 1 else VX0}, s[{R_A}:{R_A+3}], s{ST} offen lds", track=False)
    def wi(i, arr):
        r = R_C if arr else R_B
        a(f"s_add_u32 m0, s49, {(W3B if arr else W1B) + i*1024}")
        a(f"s_add_u32 s{ST}, s{SWO}, {(i // 3)*16*2752}")
        a(f"buffer_load_dwordx4 v{VW + i % 3}, s[{r}:{r+3}], s{ST} offen lds", track=False)
    for i in range(8): xi(i)
    for i in range(6): wi(i, 0)
    for i in range(6): wi(i, 1)
    a(f"s_cmp_lg_u32 s{SST}, 1")
    a(f"s_cbranch_scc1 {nobar}")
    a("s_barrier")
    a.place(nobar)
    a(f"s_cmp_eq_u32 s{SST}, 0")
    a(f"s_cbranch_scc1 {nopub}")
    a.wait(vm=20)
    k.lds_post(VT, VFULL, f"s{SST}")
    a.place(nopub)
    a(f"s_add_u32 s{SKB}, s{SKB}, 1")
    a(f"s_and_b32 s{SKB}, s{SKB}, 7")
    a(f"s_add_u32 s{SSL}, s{SSL}, {SLOT}")
    a(f"s_cmp_eq_u32 s{SSL}, {3*SLOT}")
    a(f"s_cselect_b32 s{SSL}, 0, s{SSL}")
    a(f"s_add_u32 s{SST}, s{SST}, 1")
    a(f"s_cmp_lt_u32 s{SST}, 8")
    a(f"s_cbranch_scc1 {lp}")

def loader_sync_setup(k):
    a = k.a
    VFULL, VFREE = 7, 8
    a(f"s_lshl_b32 s47, s{S_W}, 2")
    a(f"s_add_u32 s47, s47, {SY_FULL}")
    a(f"v_mov_b32 v{VFULL}, s47")
    a("v_and_b32 v10, 7, v0")
    a("v_min_u32 v10, 5, v10")
    a(f"v_lshlrev_b32 v{VFREE}, 2, v10")
    a(f"v_add_u32 v{VFREE}, {SY_FREE}, v{VFREE}")

def loader_g2(k, after_g1, barrier):
    a = k.a
    SRP, SCB, ST = 50, 51, 57
    VA, VFULL, VFREE, VT = 2, 7, 8, 9
    k.ids_g2(SRP, SCB)
    srd(a, R_A, P_W2, 1409024)
    a("v_lshrrev_b32 v10, 3, v0")
    a("v_and_b32 v11, 7, v0")
    a("v_and_b32 v12, 16, v0")
    a("v_lshrrev_b32 v12, 2, v12")
    a("v_xor_b32 v11, v11, v12")
    a("v_lshlrev_b32 v10, 10, v10")
    a(f"v_lshl_add_u32 v{VA}, v11, 4, v10")
    a(f"s_mul_i32 s47, s{S_W}, {688*1024}")
    a(f"s_lshl_b32 s48, s{SCB}, 7")
    a("s_add_u32 s47, s47, s48")
    a(f"v_add_u32 v{VA}, s47, v{VA}")
    a(f"s_mul_i32 s49, s{S_W}, 10240")
    need_free = [6, 6, 7, 7, 8, 8, 9, 10, 11]
    prev = None
    pending = []
    if after_g1: pending.append([8, 0])
    for j in range(9):
        n = 10 if j < 8 else 6
        if (after_g1 or j >= 6) and need_free[j] != prev:
            lim = need_free[j] + 1 if j < 6 else (99 if j == 6 else 0)
            while pending and pending[0][0] <= lim:
                a.wait(vm=pending[0][1]); k.lds_post(VT, VFULL, pending[0][0]); pending.pop(0)
            k.lds_wait(VT, VFREE, need_free[j])
            prev = need_free[j]
        for i in range(n):
            a(f"s_add_u32 m0, s49, {w2base(j) + i*1024}")
            a(f"s_mov_b32 s{ST}, {(80*j + 8*i)*1024}")
            a(f"buffer_load_dwordx4 v{VA}, s[{R_A}:{R_A+3}], s{ST} offen lds", track=False)
        for p in pending: p[1] += n
        pending.append([9 + j, 0])
        if barrier and j == 1: a("s_barrier")
        if not after_g1 and 1 <= j < 6:
            a.wait(vm=pending[0][1]); k.lds_post(VT, VFULL, pending[0][0]); pending.pop(0)
    while pending:
        a.wait(vm=pending[0][1]); k.lds_post(VT, VFULL, pending[0][0]); pending.pop(0)

def x_frag_addr(a, dst, extra_s=None):
    a("v_and_b32 v10, 31, v0")
    a("v_lshrrev_b32 v11, 5, v0")
    a("v_bfe_u32 v12, v0, 1, 3")
    a("v_xor_b32 v11, v11, v12")
    a("v_lshlrev_b32 v10, 7, v10")
    a("v_lshl_add_u32 v10, v11, 4, v10")
    for t in range(4):
        a(f"v_xor_b32 v{dst+t}, {32*t}, v10")
        a(f"v_add_u32 v{dst+t}, {extra_s if extra_s else XB}, v{dst+t}")

def w_frag_addr(a, dst, extra_s=None):
    a("v_bfe_u32 v10, v0, 4, 1")
    a(f"v_mul_u32_u24 v10, {W3B}, v10")
    a("v_lshrrev_b32 v11, 5, v0")
    a("v_bfe_u32 v12, v0, 2, 2")
    a("v_lshl_add_u32 v11, v11, 3, v12")
    a("v_mul_u32_u24 v11, 192, v11")
    a("v_add_u32 v10, v10, v11")
    a("v_and_b32 v11, 1, v0")
    a("v_bfe_u32 v12, v0, 1, 1")
    a("v_lshl_add_u32 v11, v11, 1, v12")
    a(f"v_lshl_add_u32 v{dst}, v11, 3, v10")
    if extra_s: a(f"v_add_u32 v{dst}, {extra_s}, v{dst}")

def consumer_sync_setup(k, vfull, vfree, slot):
    a = k.a
    a("v_and_b32 v10, 1, v0")
    a(f"v_lshlrev_b32 v{vfull}, 2, v10")
    a(f"v_add_u32 v{vfull}, {SY_FULL}, v{vfull}")
    a(f"v_mov_b32 v{vfree}, {slot}")

def round_bf16(a, v):
    a(f"v_cvt_pk_bf16_f32 v{v}, v{v}, v{v}")
    a(f"v_and_b32 v{v}, 0xffff0000, v{v}")

def finish_stats(a, vs, vq, t0, t1):
    for v in (vs, vq):
        a(f"v_mov_b32 v{t0}, v{v}")
        a(f"v_permlane32_swap_b32 v{v}, v{t0}")
        a(f"v_add_f32 v{v}, v{v}, v{t0}")
    a(f"v_mul_f32 v{vs}, {fl(1/512)}, v{vs}")
    a(f"v_mul_f32 v{t0}, v{vs}, v{vs}")
    a(f"v_mul_f32 v{vq}, {fl(1/512)}, v{vq}")
    a(f"v_sub_f32 v{vq}, v{vq}, v{t0}")
    a(f"v_max_f32 v{vq}, 0, v{vq}")
    round_bf16(a, vq)
    a(f"v_add_f32 v{vq}, {fl(1e-5)}, v{vq}")
    round_bf16(a, vq)
    a(f"v_sqrt_f32 v{vq}, v{vq}")
    round_bf16(a, vq)
    round_bf16(a, vs)

def stage_loop_tail(a, regs, sst, ssl, lp):
    a(f"s_add_u32 s{ssl}, s{ssl}, 1")
    a(f"s_cmp_eq_u32 s{ssl}, 3")
    a(f"s_cselect_b32 s47, {(-2*SLOT) & 0xffffffff}, {SLOT}".replace(f", {SLOT}", ", s58"))
    a(f"s_cselect_b32 s{ssl}, 0, s{ssl}")
    for r in regs: a(f"v_add_u32 v{r}, s47, v{r}")
    a(f"s_cmp_lt_u32 s{sst}, 8")
    a(f"s_cbranch_scc1 {lp}")

def rowstat(k):
    a = k.a
    XA, VFULL, VFREE, VT, ACC, FR = 2, 7, 8, 9, 16, 32
    SST, SSL = 53, 54
    x_frag_addr(a, XA)
    consumer_sync_setup(k, VFULL, VFREE, SY_FREE + 16)
    for i in range(16): a(f"v_mov_b32 v{ACC+i}, 0")
    a(f"s_mov_b32 s{SST}, 0"); a(f"s_mov_b32 s{SSL}, 0"); a(f"s_mov_b32 s58, {SLOT}"); a("s_mov_b32 s59, 0x3f803f80")
    a("s_barrier")
    lp = a.label("rs")
    a.place(lp)
    a(f"s_add_u32 s{SST}, s{SST}, 1")
    k.lds_wait(VT, VFULL, f"s{SST}")
    for n in range(16):
        a(f"ds_read_b128 {vr(FR+4*n, 4)}, v{XA + (n & 3)} offset:{(n >> 2)*4096}")
        if n == 7:
            for m in range(8): rs_acc(a, ACC, FR, m)
    k.lds_post(VT, VFREE, f"s{SST}")
    for m in range(8, 16): rs_acc(a, ACC, FR, m)
    a.wait(lg=0)
    stage_loop_tail(a, range(XA, XA + 4), SST, SSL, lp)
    a("v_and_b32 v10, 31, v0")
    a("v_lshlrev_b32 v10, 4, v10")
    a(f"v_add_u32 v10, {STAT}, v10")
    for rho in range(4):
        s0, q0 = ACC + 4*rho, ACC + 4*rho + 2
        a(f"v_add_f32 v{s0}, v{s0}, v{s0+1}")
        a(f"v_add_f32 v{q0}, v{q0}, v{q0+1}")
        finish_stats(a, s0, q0, 11, 12)
        o = FR + 4*rho
        a(f"v_rcp_f32 v{o}, v{q0}")
        a(f"v_mul_f32 v{o+2}, v{q0}, v{q0}")
        a(f"v_mul_f32 v{o}, {fl(-LOG2E)}, v{o}")
        a(f"v_cvt_pk_bf16_f32 v{o+1}, -v{s0}, -v{s0}")
        a(f"v_mov_b32 v{o+3}, 0")
        a(f"ds_write_b128 v10, {vr(o, 4)} offset:{rho*512}")
    a(f"v_mov_b32 v11, {SY_STAT}")
    k.lds_post(VT, 11, 1)
    k.lds_post(VT, VFREE, 64)

def rs_acc(a, ACC, FR, n):
    rho = n >> 2
    for j in range(4):
        f = FR + 4*n + j
        a(f"v_dot2c_f32_bf16 v{ACC + 4*rho + (j & 1)}, s59, v{f}")
        a(f"v_dot2c_f32_bf16 v{ACC + 4*rho + 2 + (j & 1)}, v{f}, v{f}")

def colsum(k):
    a = k.a
    WA, VFULL, VFREE, VT, ACC, FR = 2, 7, 8, 9, 16, 32
    SST, SSL = 53, 54
    w_frag_addr(a, WA)
    consumer_sync_setup(k, VFULL, VFREE, SY_FREE + 20)
    for i in range(12): a(f"v_mov_b32 v{ACC+i}, 0")
    a(f"s_mov_b32 s{SST}, 0"); a(f"s_mov_b32 s{SSL}, 0"); a(f"s_mov_b32 s58, {SLOT}"); a("s_mov_b32 s59, 0x3f803f80")
    a("s_barrier")
    lp = a.label("cs")
    a.place(lp)
    a(f"s_add_u32 s{SST}, s{SST}, 1")
    k.lds_wait(VT, VFULL, f"s{SST}")
    reads = [(t, z, T) for t in range(4) for z in range(2) for T in range(6)]
    def acc(n):
        T = reads[n][2]
        a(f"v_dot2c_f32_bf16 v{ACC+2*T}, s59, v{FR+2*n}")
        a(f"v_dot2c_f32_bf16 v{ACC+2*T+1}, s59, v{FR+2*n+1}")
    for n, (t, z, T) in enumerate(reads):
        a(f"ds_read_b64_tr_b16 {vr(FR+2*n, 2)}, v{WA} offset:{(16*t + 4*z)*192 + T*32}")
        if n >= 12: acc(n - 12)
    k.lds_post(VT, VFREE, f"s{SST}")
    for n in range(36, 48): acc(n)
    a.wait(lg=0)
    stage_loop_tail(a, [WA], SST, SSL, lp)
    a("v_lshlrev_b32 v10, 3, v0")
    a(f"v_add_u32 v10, {AEXT}, v10")
    for T in range(6):
        c = ACC + 2*T; o = FR + 4*T
        a(f"v_add_f32 v{c}, v{c}, v{c+1}")
        a(f"v_and_b32 v{o+2}, 0xffff0000, v{c}")
        a(f"v_sub_f32 v{c}, v{c}, v{o+2}")
        a(f"v_and_b32 v{o+3}, 0xffff0000, v{c}")
        a(f"v_sub_f32 v{c}, v{c}, v{o+3}")
        a(f"v_cvt_pk_bf16_f32 v{o}, v{o+2}, v{o+3}")
        a(f"v_cvt_pk_bf16_f32 v{o+1}, v{c}, 0")
        a(f"ds_write_b64 v10, {vr(o, 2)} offset:{T*512}")
    a(f"v_mov_b32 v11, {SY_STAT+4}")
    k.lds_post(VT, 11, 1)
    k.lds_post(VT, VFREE, 64)

def compute_sync_setup(k):
    a = k.a
    a(f"s_lshl_b32 s47, s{S_W}, 2")
    a(f"s_add_u32 s47, s47, {SY_FREE}")
    consumer_sync_setup(k, 7, 8, "s47")

def zero_sync_area(k, free_init=0, full_init=0):
    a = k.a
    sk = a.label("zs")
    a(f"s_cmp_lg_u32 s{S_W}, 0")
    a(f"s_cbranch_scc1 {sk}")
    a("v_lshlrev_b32 v10, 2, v0")
    a(f"v_add_u32 v10, {MISC}, v10")
    a("v_mov_b32 v11, 0")
    a("ds_write_b32 v10, v11", track=False)
    a.wait(lg=0)
    a.place(sk)

def compute_g1(k):
    a = k.a
    XA, WA, VFULL, VFREE, VT = 2, 6, 7, 8, 9
    FR, ACC = 16, 56
    SQ, SG = 50, 51
    a(f"s_lshr_b32 s52, s{S_W}, 1")
    a(f"s_and_b32 s53, s{S_W}, 1")
    a("s_lshl_b32 s47, s52, 13")
    a(f"s_add_u32 s47, s47, {XB}")
    x_frag_addr(a, XA, "s47")
    a("s_mul_i32 s47, s53, 96")
    w_frag_addr(a, WA, "s47")
    def fx(st, sub): return FR + 20*st + 4*sub
    def fw(st, T): return FR + 20*st + 8 + 4*T
    def reads(n):
        st, t = n & 1, n & 3
        out = []
        for T in range(3):
            for z in range(2):
                out.append(f"ds_read_b64_tr_b16 {vr(fw(st, T) + 2*z, 2)}, v{WA} offset:{(16*t + 4*z)*192 + T*32}")
            if T < 2:
                out.append(f"ds_read_b128 {vr(fx(st, T), 4)}, v{XA+t} offset:{T*4096}")
        return out
    k.lds_wait(VT, VFULL, 1, sleep=2)
    k.stamp()
    for r in reads(0): a(r)
    for n in range(32):
        st = n & 1
        stage = n >> 2
        nxt = []
        if n + 1 < 32:
            if (n & 3) == 3:
                k.lds_check(VT, VFULL, stage + 2)
                d = SLOT if (stage + 1) % 3 else -2*SLOT
                for r in list(range(XA, XA + 4)) + [WA]:
                    a(f"v_add_u32 v{r}, {d & 0xffffffff}, v{r}")
            nxt = reads(n + 1)
        order = [(0, 0), (1, 0), (0, 1), (1, 1), (2, 0), (2, 1)]
        for i, (T, sub) in enumerate(order):
            acc = ACC + 16*(2*T + sub)
            c = "0" if n == 0 else vr(acc, 16)
            a(f"v_mfma_f32_32x32x16_bf16 {vr(acc, 16)}, {vr(fw(st, T), 4)}, {vr(fx(st, sub), 4)}, {c}")
            take = 2 if i < 2 else 1
            for _ in range(take):
                if nxt: a(nxt.pop(0))
        if (n & 3) == 2:
            k.lds_post(VT + 1, VFREE, stage + 1)
            if stage < 7: k.lds_pre(VT, VFULL)
    k.stamp()
    a("v_and_b32 v10, 1, v0")
    a("v_lshlrev_b32 v10, 2, v10")
    a(f"v_add_u32 v10, {SY_STAT}, v10")
    k.lds_wait(VT, 10, 1)
    a("v_and_b32 v10, 31, v0")
    a("v_lshlrev_b32 v10, 4, v10")
    a("s_lshl_b32 s47, s52, 10")
    a(f"s_add_u32 s47, s47, {STAT}")
    a("v_add_u32 v10, s47, v10")
    a("v_lshlrev_b32 v11, 3, v0")
    a("s_mul_i32 s47, s53, 1536")
    a(f"s_add_u32 s47, s47, {AEXT}")
    a("v_add_u32 v11, s47, v11")
    SB = 16
    BE = 24
    AE = 32
    for sub in range(2): a(f"ds_read_b128 {vr(SB+4*sub, 4)}, v10 offset:{sub*512}")
    for T in range(3):
        a(f"ds_read_b64 {vr(AE+4*T, 2)}, v11 offset:{T*512}")
        a(f"v_mov_b32 v{AE+4*T+2}, 0"); a(f"v_mov_b32 v{AE+4*T+3}, 0")
    for sub in range(2):
        for j in range(4): a(f"v_mov_b32 v{BE+4*sub+j}, v{SB+4*sub+1}")
    for T in range(3):
        for sub in range(2):
            acc = ACC + 16*(2*T + sub)
            a(f"v_mfma_f32_32x32x16_bf16 {vr(acc, 16)}, {vr(AE+4*T, 4)}, {vr(BE+4*sub, 4)}, {vr(acc, 16)}")
    k.ids_g1(SQ, SG)
    srd(a, R_WS, P_WS, WS_SIZE)
    a(f"s_lshl_b32 s47, s{SQ}, 1")
    a("s_add_u32 s47, s47, s52")
    a(f"s_mul_i32 s54, s47, {2*H_UNIT}")
    a(f"s_lshl_b32 s55, s{SG}, 1")
    a("s_add_u32 s55, s55, s53")
    a("s_mul_i32 s56, s55, 3072")
    a("s_add_u32 s54, s54, s56")
    a("s_lshl_b32 s57, s47, 7")
    a("s_lshl2_add_u32 s57, s55, s57")
    a(f"s_add_u32 s57, s57, {F3_OFF}")
    a("v_lshlrev_b32 v10, 4, v0")
    TMP, OUT = 44, 152
    for T in range(3):
        a(f"s_mul_i32 s56, s55, 3")
        a(f"s_cmp_lt_u32 s56, {86 - T}")
        a(f"s_cselect_b32 s58, s54, 0x7f000000")
        a(f"s_add_u32 s59, s58, {H_UNIT}")
        for sub in range(2):
            acc = ACC + 16*(2*T + sub)
            av, cv = SB + 4*sub, SB + 4*sub + 2
            o = OUT + 4*((2*T + sub) & 3)
            for p in range(4): a(f"v_pk_mul_f32 {vr(TMP+2*p, 2)}, {vr(acc+2*p, 2)}, {vr(av, 2)} op_sel_hi:[1,0]")
            for p in range(8): a(f"v_exp_f32 v{TMP+p}, v{TMP+p}")
            for p in range(4): a(f"v_pk_mul_f32 {vr(acc+2*p, 2)}, {vr(acc+2*p, 2)}, {vr(acc+8+2*p, 2)}")
            for p in range(4): a(f"v_pk_fma_f32 {vr(TMP+2*p, 2)}, {vr(TMP+2*p, 2)}, {vr(cv, 2)}, {vr(cv, 2)} op_sel_hi:[1,0,0]")
            for p in range(8): a(f"v_rcp_f32 v{TMP+p}, v{TMP+p}")
            for p in range(4): a(f"v_pk_mul_f32 {vr(acc+2*p, 2)}, {vr(acc+2*p, 2)}, {vr(TMP+2*p, 2)}")
            for p in range(4): a(f"v_cvt_pk_bf16_f32 v{o+p}, v{acc+2*p}, v{acc+2*p+1}")
            a(f"buffer_store_dwordx4 {vr(o, 4)}, v10, s[{R_WS}:{R_WS+3}], s{58+sub} offen offset:{T*1024}{k.sc}")
    k.stamp()
    k.glb_post(12, 57)

def compute_g2(k):
    a = k.a
    VFULL, VFREE, VT = 7, 8, 9
    WA, VH = 1, 13
    ACC, FR, HW, NW = 16, 48, 64, 26
    SRP, SCB = 50, 51
    k.ids_g2(SRP, SCB)
    srd(a, R_WS, P_WS, WS_SIZE)
    srd(a, R_A, P_OUT, 2097152)
    a(f"s_lshr_b32 s52, s{S_W}, 1")
    a(f"s_and_b32 s53, s{S_W}, 1")
    a("v_min_u32 v10, 14, v0")
    a("s_mul_i32 s47, s53, 14")
    a("v_add_u32 v10, s47, v10")
    a(f"s_lshl_b32 s47, s{SRP}, 7")
    a(f"s_add_u32 s47, s47, {F3_OFF}")
    a("v_lshlrev_b32 v14, 2, v10")
    a("v_add_u32 v14, s47, v14")
    a(f"s_lshl1_add_u32 s54, s{SRP}, s52")
    a(f"s_mul_i32 s55, s54, {H_UNIT}")
    a(f"s_mul_i32 s47, s53, {43*1024}")
    a("s_add_u32 s55, s55, s47")
    a(f"v_lshlrev_b32 v{VH}, 4, v0")
    a(f"v_add_u32 v{VH}, s55, v{VH}")
    a("v_lshrrev_b32 v10, 5, v0")
    a("v_bfe_u32 v11, v0, 2, 2")
    a("v_lshl_add_u32 v10, v10, 3, v11")
    a("v_lshlrev_b32 v10, 7, v10")
    a("v_bfe_u32 v11, v0, 3, 1")
    a("v_xor_b32 v11, s53, v11")
    a("v_lshl_add_u32 v10, v11, 6, v10")
    a("v_and_b32 v11, 1, v0")
    a("v_lshl_add_u32 v10, v11, 5, v10")
    a("v_bfe_u32 v11, v0, 4, 1")
    a("v_lshl_add_u32 v10, v11, 4, v10")
    a("v_bfe_u32 v11, v0, 1, 1")
    a("v_lshl_add_u32 v10, v11, 3, v10")
    a("v_xor_b32 v11, 64, v10")
    a("s_mul_i32 s47, s53, 10240")
    for gs in range(3):
        a(f"s_add_u32 s48, s47, {gs*SLOT}")
        a(f"v_add_u32 v{WA+2*gs}, s48, v10")
        a(f"v_add_u32 v{WA+2*gs+1}, s48, v11")
    a("s_lshl_b32 s47, s53, 2")
    a(f"s_add_u32 s47, s47, {SY_FULL}")
    a(f"v_mov_b32 v{VFULL}, s47")
    k.glb_wait(VT, 14)
    k.stamp()
    def hload(n):
        a(f"s_mov_b32 s47, {(n >> 2)*4096}")
        a(f"buffer_load_dwordx4 {vr(HW + 4*(n % NW), 4)}, v{VH}, s[{R_WS}:{R_WS+3}], s47 offen offset:{(n & 3)*1024}{k.sc}")
    for n in range(NW): hload(n)
    def reads(n):
        j, t = n // 5, n % 5
        out = []
        for cc in range(2):
            for z in range(2):
                out.append(f"ds_read_b64_tr_b16 {vr(FR + 8*(n & 1) + 4*cc + 2*z, 2)}, v{WA + 2*W2_GS[j] + cc} offset:{(j & 1)*20480 + (16*t + 4*z)*128}")
        return out
    k.lds_wait(VT, VFULL, 9)
    for r in reads(0): a(r)
    for n in range(43):
        j, t = n // 5, n % 5
        nxt = []
        if n + 1 < 43:
            if t == 4: k.lds_check(VT, VFULL, 10 + j)
            nxt = reads(n + 1)
        for cc in range(2):
            acc = ACC + 16*cc
            c = "0" if n == 0 else vr(acc, 16)
            a(f"v_mfma_f32_32x32x16_bf16 {vr(acc, 16)}, {vr(FR + 8*(n & 1) + 4*cc, 4)}, {vr(HW + 4*(n % NW), 4)}, {c}")
            for _ in range(2):
                if nxt: a(nxt.pop(0))
        if n + NW < 43: hload(n + NW)
        if t == 3:
            k.lds_post(VT + 1, VFREE, 9 + j)
            k.lds_pre(VT, VFULL)
        if n == 36:
            a("v_and_b32 v11, 3, v0")
            a("v_lshlrev_b32 v11, 2, v11")
            a(f"v_add_u32 v11, {SY_FREE}, v11")
            k.lds_wait(12, 11, 12)
    k.stamp()
    EX = w2base(3)
    a("v_lshlrev_b32 v10, 4, v0")
    a(f"s_xor_b32 s47, s{S_W}, 1")
    a("s_lshl_b32 s48, s47, 12")
    a(f"s_add_u32 s48, s48, {EX}")
    a("v_add_u32 v11, s48, v10")
    for i in range(4): a(f"ds_write_b128 v11, {vr(ACC+16+4*i, 4)} offset:{i*1024}")
    a("s_lshl_b32 s47, s47, 2")
    a(f"s_add_u32 s47, s47, {SY_CEX}")
    a("v_mov_b32 v11, s47")
    k.lds_post(VT, 11, 1)
    a("v_and_b32 v11, 1, v0")
    a("v_lshlrev_b32 v11, 4, v11")
    a(f"s_lshl_b32 s47, s{S_W}, 2")
    a(f"s_add_u32 s47, s47, {SY_Y}")
    a("v_add_u32 v11, s47, v11")
    assert SY_CEX - SY_Y == 16
    a(f"s_lshl_b32 s48, s{S_W}, 12")
    a(f"s_add_u32 s48, s48, {EX}")
    a("v_add_u32 v12, s48, v10")
    a(f"s_mul_i32 s48, s{S_W}, 6144")
    a(f"s_add_u32 s48, s48, {SPEC}")
    a("v_add_u32 v14, s48, v10")
    a("v_and_b32 v15, 31, v0")
    a("v_lshlrev_b32 v15, 16, v15")
    a("v_lshrrev_b32 v10, 5, v0")
    a("v_lshl_add_u32 v15, v10, 5, v15")
    a("s_lshl_b32 s47, s54, 10")
    a(f"s_lshl_b32 s48, s{SCB}, 7")
    a("s_add_u32 s47, s47, s48")
    a("s_lshl_b32 s48, s53, 6")
    a("s_add_u32 s47, s47, s48")
    k.lds_wait(VT, 11, 1, sleep=None)
    for i in range(4): a(f"ds_read_b128 {vr(64+4*i, 4)}, v12 offset:{i*1024}")
    for i in range(4): a(f"ds_read_b128 {vr(80+4*i, 4)}, v14 offset:{i*1024}")
    for i in range(8): a(f"v_pk_add_f32 {vr(ACC+2*i, 2)}, {vr(ACC+2*i, 2)}, {vr(64+2*i, 2)}")
    for i in range(8): a(f"v_pk_add_f32 {vr(ACC+2*i, 2)}, {vr(ACC+2*i, 2)}, {vr(80+2*i, 2)}")
    for i in range(8): a(f"v_cvt_pk_bf16_f32 v{96+i}, v{ACC+2*i}, v{ACC+2*i+1}")
    a(f"buffer_store_dwordx4 {vr(96, 4)}, v15, s[{R_A}:{R_A+3}], s47 offen")
    a(f"buffer_store_dwordx4 {vr(100, 4)}, v15, s[{R_A}:{R_A+3}], s47 offen offset:16")
    k.stamp()

V_SYW, V_SYR, V_T, V_SGN = 1, 2, 3, 4

def spec_setup(k):
    a = k.a
    a(f"s_lshl_b32 s47, s{S_W}, 2")
    a(f"s_add_u32 s47, s47, {SY_SPEC}")
    a(f"v_mov_b32 v{V_SYW}, s47")
    a("v_and_b32 v10, 3, v0")
    a(f"v_lshlrev_b32 v{V_SYR}, 2, v10")
    a(f"v_add_u32 v{V_SYR}, {SY_SPEC}, v{V_SYR}")
    a("v_and_b32 v10, 1, v0")
    a("s_mov_b32 s47, 0x80008000")
    a(f"v_mul_lo_u32 v{V_SGN}, v10, s47")
    srd(a, R_WS, P_WS, WS_SIZE)
    k.spec_n = 0

def spec_sync(k):
    k.spec_n += 1
    k.lds_post(V_T, V_SYW, k.spec_n)
    k.lds_wait(V_T, V_SYR, k.spec_n, sleep=None)

def gen_pairs(a, dst, n, base, step, idx, t0, same_dword=True):
    for i in range(n):
        t = t0 + 3*(i & 1)
        c = idx(i)
        if c == 0: a(f"v_mov_b32 v{t}, v{base}")
        else: a(f"v_fmamk_f32 v{t}, v{step}, {fl(float(c))}, v{base}")
        a(f"v_cos_f32 v{t+1}, v{t}")
        a(f"v_sin_f32 v{t+2}, v{t}")
        if i > 0:
            p = t0 + 3*((i - 1) & 1)
            a(f"v_cvt_pk_bf16_f32 v{dst+i-1}, v{p+1}, v{p+2}")
    p = t0 + 3*((n - 1) & 1)
    a(f"v_cvt_pk_bf16_f32 v{dst+n-1}, v{p+1}, v{p+2}")

def gen_dft32(a, dc, ds, base, step, t0):
    for i in range(8):
        u, e = i >> 2, 2*(i & 3)
        for j in range(2):
            c = ((e + j) & 3) + 8*(2*u + ((e + j) >> 2))
            t = t0 + 3*j
            if c == 0: a(f"v_mov_b32 v{t}, v{base}")
            else: a(f"v_fmamk_f32 v{t}, v{step}, {fl(float(c))}, v{base}")
            a(f"v_cos_f32 v{t+1}, v{t}")
            a(f"v_sin_f32 v{t+2}, v{t}")
        a(f"v_cvt_pk_bf16_f32 v{dc+i}, v{t0+1}, v{t0+4}")
        a(f"v_cvt_pk_bf16_f32 v{ds+i}, v{t0+2}, v{t0+5}")

def sstage(a, src, pa, pb, dc, ds, d):
    for i in range(8): a(f"v_cvt_pk_bf16_f32 v{pa+i}, v{src+2*i}, v{src+2*i+1}")
    for i in range(8): a(f"v_xor_b32_dpp v{pb+i}, v{pa+i}, v{V_SGN} {QP}")
    a(f"v_mfma_f32_32x32x16_bf16 {vr(d, 16)}, {vr(pa, 4)}, {vr(dc, 4)}, 0")
    a(f"v_mfma_f32_32x32x16_bf16 {vr(d, 16)}, {vr(pa+4, 4)}, {vr(dc+4, 4)}, {vr(d, 16)}")
    a(f"v_mfma_f32_32x32x16_bf16 {vr(d, 16)}, {vr(pb, 4)}, {vr(ds, 4)}, {vr(d, 16)}")
    a(f"v_mfma_f32_32x32x16_bf16 {vr(d, 16)}, {vr(pb+4, 4)}, {vr(ds+4, 4)}, {vr(d, 16)}")

def p1(k):
    a = k.a
    SU, SQ, SG = 50, 51, 52
    F, C2, S2, ACC, XF, WT, ST4 = 16, 48, 56, 64, 128, 144, 152
    AL, BE, SG2, COL = 156, 157, 158, 159
    a(f"s_and_b32 s{SU}, s{S_XCD}, 1")
    a(f"s_lshl_b32 s{SU}, s{SU}, 2")
    a(f"s_lshr_b32 s47, s{S_XCD}, 1")
    a(f"s_add_u32 s{SU}, s{SU}, s47")
    a(f"s_lshl_b32 s{SU}, s{SU}, 3")
    a(f"s_and_b32 s47, s{S_IDX}, 7")
    a(f"s_add_u32 s{SU}, s{SU}, s47")
    a(f"s_lshr_b32 s{SQ}, s{S_IDX}, 3")
    a(f"s_lshl2_add_u32 s{SG}, s{SQ}, s{S_W}")
    srd(a, R_A, P_X, 2097152)
    a("v_lshlrev_b32 v5, 4, v0")
    a(f"s_lshl_b32 s47, s{S_W}, 19")
    a(f"s_lshl_b32 s48, s{SU}, 10")
    a("s_add_u32 s47, s47, s48")
    a(f"s_mul_i32 s48, s{S_W}, {8*1040}")
    for i in range(8):
        a(f"s_add_u32 m0, s48, {SPEC + i*1040}")
        a(f"s_add_u32 s49, s47, {i*65536}")
        a(f"buffer_load_dwordx4 v5, s[{R_A}:{R_A+3}], s49 offen lds", tag="x")
    k.nonce_load()
    a(f"s_bitcmp1_b32 s{SU}, 0")
    a(f"s_cselect_b32 s{R_B}, s{P_WI}, s{P_WR}")
    a(f"s_cselect_b32 s{R_B+1}, s{P_WI+1}, s{P_WR+1}")
    a(f"s_mov_b32 s{R_B+2}, {2048*514}")
    a(f"s_mov_b32 s{R_B+3}, 0x00020000")
    a(f"s_bfe_u32 s53, s{SU}, 0x20001")
    a(f"s_bfe_u32 s54, s{SU}, 0x10003")
    a(f"s_lshr_b32 s55, s{SU}, 4")
    a("s_lshl_b32 s56, s55, 9")
    a("s_lshl_b32 s47, s54, 6")
    a("s_add_u32 s56, s56, s47")
    a("s_lshl_b32 s47, s53, 3")
    a("s_add_u32 s56, s56, s47")
    def j2part(dst, src_shift):
        a(f"v_bfe_u32 v10, v0, {src_shift}, 1")
        a(f"v_bfe_u32 v11, v0, {src_shift+1}, 2")
        a("v_lshl_add_u32 v10, v11, 2, v10")
        a(f"v_mul_u32_u24 v{dst}, {32*514}, v10")
    j2part(6, 3)
    a("v_and_b32 v10, 7, v0")
    a("v_lshl_add_u32 v6, v10, 4, v6")
    a(f"s_lshl1_add_u32 s47, s{S_W}, s56")
    a("s_mul_i32 s47, s47, 514")
    a(f"s_lshl_b32 s48, s{SQ}, 7")
    a("s_add_u32 s47, s47, s48")
    a(f"buffer_load_dwordx4 {vr(WT, 4)}, v6, s[{R_B}:{R_B+3}], s47 offen")
    a(f"buffer_load_dwordx4 {vr(WT+4, 4)}, v6, s[{R_B}:{R_B+3}], s47 offen offset:514")
    a("s_lshl_b32 s57, s55, 11")
    a(f"s_and_b32 s47, s{SU}, 1")
    a("s_lshl_b32 s47, s47, 10")
    a("s_add_u32 s57, s57, s47")
    a("s_lshl_b32 s47, s54, 9")
    a("s_add_u32 s57, s57, s47")
    a("s_lshl_b32 s47, s53, 7")
    a("s_add_u32 s57, s57, s47")
    a(f"s_add_u32 s57, s57, {WS_WT}")
    j2part(7, 0)
    a("v_lshrrev_b32 v10, 3, v0")
    a("v_mul_u32_u24 v10, 514, v10")
    a("v_add_u32 v7, v7, v10")
    a("s_mul_i32 s47, s56, 514")
    sk = a.label("c256")
    a(f"s_cmp_lg_u32 s{SG}, 0")
    a(f"s_cbranch_scc1 {sk}")
    a(f"buffer_load_ushort v{COL}, v7, s[{R_B}:{R_B+3}], s47 offen offset:512", track=False)
    a.place(sk)
    a("v_bfe_u32 v10, v0, 1, 4")
    a(f"s_lshl_b32 s47, s{SG}, 4")
    a("v_add_u32 v11, s47, v10")
    a("v_and_b32 v12, 1, v0")
    a("v_lshl_add_u32 v13, v11, 1, v12")
    a("v_cmp_eq_u32 vcc, 1, v13")
    a("v_mov_b32 v14, 0x100")
    a("v_cndmask_b32 v11, v11, v14, vcc")
    a("v_cndmask_b32 v14, v12, 0, vcc")
    a("v_cvt_f32_u32 v11, v11")
    a("v_cvt_f32_u32 v14, v14")
    a(f"v_mul_f32 v8, {fl(1/512)}, v11")
    a("v_lshrrev_b32 v15, 5, v0")
    a("v_cvt_f32_u32 v15, v15")
    a(f"v_mul_f32 v9, {fl(8.0)}, v15")
    a("v_mul_f32 v9, v9, v8")
    a(f"v_fmamk_f32 v9, v14, {fl(0.25)}, v9")
    for i in range(32):
        t, e = i >> 2, 2*(i & 3)
        tt = XF + 4*(i & 1)
        for j in range(2):
            c = 16*t + e + j
            if c == 0: a(f"v_mov_b32 v{tt+j}, v9")
            else: a(f"v_fmamk_f32 v{tt+j}, v8, {fl(float(c))}, v9")
        for j in range(2): a(f"v_cos_f32 v{tt+2+j}, v{tt+j}")
        if i > 0:
            pp = XF + 4*((i - 1) & 1)
            a(f"v_cvt_pk_bf16_f32 v{F+i-1}, v{pp+2}, v{pp+3}")
    a(f"v_cvt_pk_bf16_f32 v{F+31}, v{XF+6}, v{XF+7}")
    a("v_cvt_f32_u32 v10, v10")
    a("v_cvt_f32_u32 v12, v12")
    a(f"v_mul_f32 v10, {fl(0.25)}, v10")
    a(f"v_cos_f32 v{AL}, v10")
    a("v_fma_f32 v11, v12, 0.5, v10")
    a(f"v_sin_f32 v{BE}, v11")
    a("v_add_f32 v10, v10, v10")
    a(f"v_cos_f32 v{SG2}, v10")
    a(f"v_rndne_f32 v{AL}, v{AL}"); a(f"v_rndne_f32 v{BE}, v{BE}"); a(f"v_rndne_f32 v{SG2}, v{SG2}")
    a("v_lshrrev_b32 v10, 5, v0")
    a("v_or_b32 v10, v10, v13")
    a("v_cmp_eq_u32 vcc, 0, v10")
    a("v_mov_b32 v11, 0x4400")
    a("v_cndmask_b32 v160, 0, v11, vcc")
    for j in range(1, 4): a(f"v_mov_b32 v{160+j}, 0")
    for j in range(1, 4): a(f"v_mov_b32 v{164+j}, 0")
    a("v_and_b32 v10, 31, v0")
    a("v_cvt_f32_u32 v10, v10")
    a(f"v_mul_f32 v8, {fl(1/32)}, v10")
    a(f"v_cvt_f32_u32 v11, s{SU}")
    a("v_mul_f32 v11, v11, v10")
    a(f"v_mul_f32 v9, {fl(1/2048)}, v11")
    a("v_mul_f32 v11, 4.0, v15")
    a("v_fmac_f32 v9, v11, v8")
    gen_dft32(a, C2, S2, 9, 8, XF)
    for i in range(4): a(f"v_mov_b32 v{ST4+i}, 0")
    a("s_mov_b32 s59, 0x3f803f80")
    a("v_and_b32 v10, 31, v0")
    a("v_mul_u32_u24 v8, 1040, v10")
    a("v_lshrrev_b32 v11, 5, v0")
    a("v_lshl_add_u32 v8, v11, 4, v8")
    a(f"v_add_u32 v8, {SPEC}, v8")
    a.wait(lg=0)
    k.nonce_finish()
    a("s_barrier")
    k.stamp()
    a.wait_tag("x")
    spec_sync(k)
    k.stamp()
    def rd(n): a(f"ds_read_b128 {vr(XF + 4*(n & 3), 4)}, v8 offset:{32*n}")
    for n in range(3): rd(n)
    for n in range(32):
        q, t = n >> 3, n & 7
        acc = ACC + 16*q
        f = XF + 4*(n & 3)
        a(f"v_mfma_f32_32x32x16_bf16 {vr(acc, 16)}, {vr(f, 4)}, {vr(F+4*t, 4)}, {'0' if t == 0 else vr(acc, 16)}")
        if n + 3 < 32: rd(n + 3)
        for j in range(4):
            a(f"v_dot2c_f32_bf16 v{ST4 + (j & 1)}, s59, v{f+j}")
            a(f"v_dot2c_f32_bf16 v{ST4 + 2 + (j & 1)}, v{f+j}, v{f+j}")
    k.spec_n += 1
    k.lds_post(V_T, V_SYW, k.spec_n)
    a(f"v_add_f32 v{ST4}, v{ST4}, v{ST4+1}")
    a(f"v_add_f32 v{ST4+2}, v{ST4+2}, v{ST4+3}")
    finish_stats(a, ST4, ST4 + 2, 10, 11)
    a(f"v_rcp_f32 v10, v{ST4+2}")
    a(f"v_cvt_pk_bf16_f32 v164, -v{ST4}, 0")
    a(f"v_mul_f32 v10, {fl(2.0**-19)}, v10")
    a("v_and_b32 v11, 31, v0")
    a(f"s_lshl_b32 s47, s{S_W}, 7")
    a(f"s_add_u32 s47, s47, {RSB}")
    a("v_lshlrev_b32 v11, 2, v11")
    a("v_add_u32 v11, s47, v11")
    a("ds_write_b32 v11, v10")
    a("v_lshrrev_b32 v11, 5, v0")
    a("v_lshlrev_b32 v11, 4, v11")
    a("v_add_u32 v11, s47, v11")
    for i in range(4): a(f"ds_read_b128 {vr(XF+4*i, 4)}, v11 offset:{32*i}")
    a(f"v_mfma_f32_32x32x16_bf16 {vr(ACC, 16)}, {vr(164, 4)}, {vr(160, 4)}, {vr(ACC, 16)}")
    k.lds_wait(V_T, V_SYR, k.spec_n, sleep=None)
    a(f"s_mul_i32 s47, s{S_W}, 2080")
    a(f"s_add_u32 s47, s47, {SPEC}")
    a("v_add_u32 v10, s47, v5")
    a(f"ds_write_b128 v10, {vr(WT, 4)}")
    a(f"ds_write_b128 v10, {vr(WT+4, 4)} offset:1040")
    k.spec_n += 1
    k.lds_post(V_T, V_SYW, k.spec_n)
    for r in range(16): a(f"v_fmac_f32 v{ACC+16+r}, v{SG2}, v{ACC+48+r}")
    for r in range(16): a(f"v_fmac_f32 v{ACC+r}, v{SG2}, v{ACC+32+r}")
    for r in range(16): a(f"v_fmac_f32 v{ACC+r}, v{AL}, v{ACC+16+r}")
    for r in range(16): a(f"v_fmac_f32_dpp v{ACC+r}, v{ACC+16+r}, v{BE} {QP}")
    for r in range(8): a(f"v_pk_mul_f32 {vr(ACC+2*r, 2)}, {vr(ACC+2*r, 2)}, {vr(XF+2*r, 2)}")
    sstage(a, ACC, ACC + 32, ACC + 40, C2, S2, ACC + 16)
    k.lds_wait(V_T, V_SYR, k.spec_n, sleep=None)
    a("v_and_b32 v10, 7, v0")
    a("v_mul_u32_u24 v11, 1040, v10")
    a("v_lshrrev_b32 v12, 3, v0")
    a("v_lshl_add_u32 v11, v12, 1, v11")
    a(f"s_lshl_b32 s47, s{S_W}, 5")
    a(f"s_add_u32 s47, s47, {SPEC}")
    a("v_add_u32 v11, s47, v11")
    for kk in range(2):
        for d in range(8): a(f"ds_read_u16 v{F+8*kk+d}, v11 offset:{d*128 + kk*16}")
    a("v_lshlrev_b32 v12, 13, v12")
    a("v_lshl_add_u32 v12, v10, 4, v12")
    a("v_and_b32 v13, 31, v0")
    a("v_lshlrev_b32 v13, 2, v13")
    a("v_lshrrev_b32 v14, 5, v0")
    a("v_lshl_add_u32 v13, v14, 14, v13")
    a(f"s_lshl_b32 s58, s{SG}, 17")
    a(f"s_lshl_b32 s47, s{SU}, 7")
    a("s_add_u32 s47, s47, s58")
    a(f"s_add_u32 s47, s47, {WS_Y1}")
    for d in range(8):
        a(f"v_cvt_pk_bf16_f32 v{ACC+48+d}, v{ACC+16+2*d}, v{ACC+16+2*d+1}")
        a(f"s_add_u32 s48, s47, {((d & 1) + 4*(d >> 1))*8192}")
        a(f"buffer_store_dword v{ACC+48+d}, v13, s[{R_WS}:{R_WS+3}], s48 offen{k.sc}")
    a("s_add_u32 s47, s57, s58")
    a(f"s_add_u32 s48, s47, {8*8192}")
    for kk in range(2):
        for d in range(4): a(f"v_lshl_or_b32 v{WT+4*kk+d}, v{F+8*kk+2*d+1}, 16, v{F+8*kk+2*d}")
        a(f"buffer_store_dwordx4 {vr(WT+4*kk, 4)}, v12, s[{R_WS}:{R_WS+3}], s{47+kk} offen{k.sc}")
    sk = a.label("c256s")
    a(f"s_cmp_lg_u32 s{SG}, 0")
    a(f"s_cbranch_scc1 {sk}")
    a(f"s_add_u32 s47, s57, {256*8192}")
    a("v_lshlrev_b32 v10, 1, v0")
    a.raw("    s_waitcnt vmcnt(0)")
    a(f"buffer_store_short v{COL}, v10, s[{R_WS}:{R_WS+3}], s47 offen{k.sc}", track=False)
    a.place(sk)
    a(f"s_lshl_b32 s47, s{SG}, 8")
    a(f"s_lshl2_add_u32 s47, s{SU}, s47")
    a(f"s_add_u32 s47, s47, {F1_OFF}")
    k.glb_post(10, 47)
    k.stamp()

def p2(k):
    a = k.a
    SK = 50
    C3, TC, TS, C5, S5, YF, D, WR, WI, TMP = 16, 48, 64, 80, 88, 96, 128, 144, 148, 152
    PA, PB = SPEC, SPEC + 8192
    a(f"s_xor_b32 s{SK}, s2, 0xff")
    a("v_bfe_u32 v10, v0, 1, 4")
    a(f"s_lshl_b32 s47, s{S_W}, 4")
    a("v_add_u32 v10, s47, v10")
    a("v_cvt_f32_u32 v10, v10")
    a("v_and_b32 v11, 1, v0")
    a("v_cvt_f32_u32 v11, v11")
    a("v_lshrrev_b32 v12, 5, v0")
    a("v_cvt_f32_u32 v12, v12")
    a(f"v_mul_f32 v8, {fl(1/64)}, v10")
    a("v_add_f32 v13, v12, v12")
    a("v_mul_f32 v9, v13, v8")
    a(f"v_fmamk_f32 v9, v11, {fl(0.25)}, v9")
    gen_pairs(a, C3, 32, 9, 8, lambda i: 8*(i >> 2) + 4*((i >> 1) & 1) + (i & 1), TMP)
    a("v_fma_f32 v13, v11, -2.0, 1.0")
    a("v_mul_f32 v8, v13, v10")
    a(f"v_mul_f32 v8, {fl(1/2048)}, v8")
    a("v_mul_f32 v13, 4.0, v12")
    a("v_mul_f32 v9, v13, v8")
    for r in range(16):
        c = (r & 3) + 8*(r >> 2)
        t = TMP + (r & 1)
        if c == 0: a(f"v_mov_b32 v{t}, v9")
        else: a(f"v_fmamk_f32 v{t}, v8, {fl(float(c))}, v9")
        a(f"v_cos_f32 v{TC+r}, v{t}")
        a(f"v_sin_f32 v{TS+r}, v{t}")
    a("v_and_b32 v10, 31, v0")
    a("v_cvt_f32_u32 v10, v10")
    a(f"v_mul_f32 v8, {fl(1/32)}, v10")
    a("v_mul_f32 v9, v13, v8")
    gen_dft32(a, C5, S5, 9, 8, TMP)
    a("v_and_b32 v5, 31, v0")
    a("v_lshlrev_b32 v5, 2, v5")
    a("v_lshrrev_b32 v10, 5, v0")
    a("v_lshl_add_u32 v5, v10, 8, v5")
    a("v_lshlrev_b32 v6, 4, v0")
    a(f"s_lshl_b32 s51, s{SK}, 13")
    a(f"s_lshl_b32 s47, s{S_W}, 11")
    a("s_add_u32 s51, s51, s47")
    a(f"s_add_u32 s52, s51, {WS_Y1}")
    a(f"s_add_u32 s53, s51, {WS_WT}")
    a(f"s_add_u32 s54, s51, {WS_Z}")
    a(f"s_add_u32 s47, s47, {SPEC}")
    a("v_add_u32 v7, s47, v6")
    a(f"v_add_u32 v8, {SPEC}, v6")
    a(f"s_lshr_b32 s47, s{SK}, 4")
    a("s_lshl_b32 s47, s47, 8")
    a(f"s_add_u32 s47, s47, {F1_OFF}")
    a("v_lshlrev_b32 v9, 2, v0")
    a("v_add_u32 v9, s47, v9")
    k.stamp()
    k.glb_wait(V_T, 9)
    k.stamp()
    for d in range(8):
        a(f"buffer_load_dword v{YF+d}, v5, s[{R_WS}:{R_WS+3}], s52 offen offset:{((d & 1) + 4*(d >> 1))*128}{k.sc}")
    a(f"buffer_load_dwordx4 {vr(WR, 4)}, v6, s[{R_WS}:{R_WS+3}], s53 offen{k.sc}")
    a(f"buffer_load_dwordx4 {vr(WI, 4)}, v6, s[{R_WS}:{R_WS+3}], s53 offen offset:1024{k.sc}")
    if k.cfg.fused: spec_sync(k)
    a(f"ds_write_b128 v7, {vr(YF, 4)}")
    a(f"ds_write_b128 v7, {vr(YF+4, 4)} offset:1024")
    spec_sync(k)
    for t in range(8): a(f"ds_read_b128 {vr(YF+4*t, 4)}, v8 offset:{t*1024}")
    for t in range(8):
        a(f"v_mfma_f32_32x32x16_bf16 {vr(D, 16)}, {vr(C3+4*t, 4)}, {vr(YF+4*t, 4)}, {'0' if t == 0 else vr(D, 16)}")
    spc, back = a.label("p2s"), a.label("p2b")
    a.wait(vm=0)
    a(f"s_cmp_eq_u32 s{SK}, 0")
    a(f"s_cbranch_scc1 {spc}")
    n0 = k.spec_n
    for d in range(8):
        wr, wi = YF + 2*d, YF + 2*d + 1
        if d & 1:
            a(f"v_and_b32 v{wr}, 0xffff0000, v{WR+d//2}"); a(f"v_and_b32 v{wi}, 0xffff0000, v{WI+d//2}")
        else:
            a(f"v_lshlrev_b32 v{wr}, 16, v{WR+d//2}"); a(f"v_lshlrev_b32 v{wi}, 16, v{WI+d//2}")
    for d in range(8):
        wr, wi, ur, ui = YF + 2*d, YF + 2*d + 1, D + 2*d, D + 2*d + 1
        o = YF + 16 + 2*d
        a(f"v_mul_f32 v{o}, v{ur}, v{wr}")
        a(f"v_mul_f32 v{o+1}, v{ur}, v{wi}")
        a(f"v_fma_f32 v{o}, -v{ui}, v{wi}, v{o}")
        a(f"v_fmac_f32 v{o+1}, v{ui}, v{wr}")
    a.place(back)
    k.spec_n = n0 + 3
    for d in range(8): a(f"v_cvt_pk_bf16_f32 v{TMP+d}, v{YF+16+2*d}, -v{YF+16+2*d+1}")
    a(f"ds_write_b128 v7, {vr(TMP, 4)} offset:8192")
    a(f"ds_write_b128 v7, {vr(TMP+4, 4)} offset:9216")
    spec_sync(k)
    for t in range(8): a(f"ds_read_b128 {vr(YF+4*t, 4)}, v8 offset:{8192 + t*1024}")
    for t in range(8):
        a(f"v_mfma_f32_32x32x16_bf16 {vr(D, 16)}, {vr(YF+4*t, 4)}, {vr(C3+4*t, 4)}, {'0' if t == 0 else vr(D, 16)}")
    for r in range(16): a(f"v_mul_f32 v{TC+r}, v{D+r}, v{TC+r}")
    for r in range(16): a(f"v_fmac_f32_dpp v{TC+r}, v{D+r}, v{TS+r} {QP}")
    sstage(a, TC, YF, YF + 8, C5, S5, D)
    for d in range(8):
        a(f"v_cvt_pk_bf16_f32 v{TMP+d}, v{D+2*d}, v{D+2*d+1}")
        a(f"buffer_store_dword v{TMP+d}, v5, s[{R_WS}:{R_WS+3}], s54 offen offset:{((d & 1) + 4*(d >> 1))*128}{k.sc}")
    a(f"s_lshl_b32 s47, s{S_W}, 10")
    a(f"s_lshl2_add_u32 s47, s{SK}, s47")
    a(f"s_add_u32 s47, s47, {F2_OFF}")
    k.glb_post(10, 47)
    k.stamp()
    b = Asm(); b.uid = a.uid + 1000
    kb = K(b, k.cfg, k.kid); kb.spec_n = n0
    b.place(spc)
    b.nop(12)
    XR, XI, E = TMP, TMP + 4, YF
    b(f"s_add_u32 s47, s53, {256*8192}")
    b(f"buffer_load_dwordx4 {vr(XR, 4)}, v6, s[{R_WS}:{R_WS+3}], s47 offen{k.sc}")
    b(f"buffer_load_dwordx4 {vr(XI, 4)}, v6, s[{R_WS}:{R_WS+3}], s47 offen offset:1024{k.sc}")
    b("v_and_b32 v10, 31, v0")
    b("v_lshrrev_b32 v11, 5, v0")
    b("v_lshl_add_u32 v10, v11, 6, v10")
    b(f"s_lshl_b32 s47, s{S_W}, 9")
    b("v_add_u32 v10, s47, v10")
    b("v_lshlrev_b32 v11, 4, v10")
    b(f"v_add_u32 v11, {SPEC}, v11")
    b("s_mov_b32 s47, 0x05040100")
    b("s_mov_b32 s48, 0x07060302")
    spec_sync(kb)
    for d in range(8):
        sel = 48 if d & 1 else 47
        b(f"v_mov_b32 v{E+4*d}, v{D+2*d}")
        b(f"v_mov_b32 v{E+4*d+1}, v{D+2*d+1}")
        b(f"v_perm_b32 v{E+4*d+2}, v{WI+d//2}, v{WR+d//2}, s{sel}")
        b(f"v_perm_b32 v{E+4*d+3}, v{XI+d//2}, v{XR+d//2}, s{sel}")
        b(f"ds_write_b128 v11, {vr(E+4*d, 4)} offset:{((d & 1) + 4*(d >> 1))*512}")
    spec_sync(kb)
    M = 144
    for d in range(8):
        b(f"v_sub_u32 v12, {2048 - 32*((d & 1) + 4*(d >> 1))}, v10")
        b("v_and_b32 v12, 0x7ff, v12")
        b("v_lshlrev_b32 v12, 4, v12")
        b(f"v_add_u32 v12, {SPEC}, v12")
        b(f"ds_read_b128 {vr(M, 4)}, v12")
        e = E + 4*d
        T0 = 148
        b(f"v_lshlrev_b32 v{T0}, 16, v{e+2}");   b(f"v_and_b32 v{T0+1}, 0xffff0000, v{e+2}")
        b(f"v_lshlrev_b32 v{T0+2}, 16, v{e+3}"); b(f"v_and_b32 v{T0+3}, 0xffff0000, v{e+3}")
        b(f"v_lshlrev_b32 v{T0+4}, 16, v{M+2}"); b(f"v_and_b32 v{T0+5}, 0xffff0000, v{M+2}")
        b(f"v_lshlrev_b32 v{T0+6}, 16, v{M+3}"); b(f"v_and_b32 v{T0+7}, 0xffff0000, v{M+3}")
        b(f"v_add_f32 v{T0}, v{T0}, v{T0+4}");     b(f"v_sub_f32 v{T0+1}, v{T0+1}, v{T0+5}")
        b(f"v_add_f32 v{T0+2}, v{T0+2}, v{T0+6}"); b(f"v_sub_f32 v{T0+3}, v{T0+3}, v{T0+7}")
        b(f"v_add_f32 v{T0+4}, v{T0}, v{T0+2}");   b(f"v_add_f32 v{T0+5}, v{T0+1}, v{T0+3}")
        b(f"v_sub_f32 v{T0+6}, v{T0}, v{T0+2}");   b(f"v_sub_f32 v{T0+7}, v{T0+1}, v{T0+3}")
        ur, ui = D + 2*d, D + 2*d + 1
        b(f"v_mul_f32 v{T0}, v{ur}, v{T0+4}")
        b(f"v_mul_f32 v{T0+1}, v{ur}, v{T0+5}")
        b(f"v_fma_f32 v{T0}, -v{ui}, v{T0+5}, v{T0}")
        b(f"v_fmac_f32 v{T0+1}, v{ui}, v{T0+4}")
        b(f"v_fmac_f32 v{T0}, v{M}, v{T0+6}")
        b(f"v_fmac_f32 v{T0+1}, v{M}, v{T0+7}")
        b(f"v_fmac_f32 v{T0}, v{M+1}, v{T0+7}")
        b(f"v_fma_f32 v{T0+1}, -v{M+1}, v{T0+6}, v{T0+1}")
        b(f"v_mul_f32 v{ur}, {fl(0.25)}, v{T0}")
        b(f"v_mul_f32 v{ui}, {fl(0.25)}, v{T0+1}")
    for r in range(16): b(f"v_mov_b32 v{YF+16+r}, v{D+r}")
    spec_sync(kb)
    b.wait(vm=0, lg=0)
    b(f"s_branch {back}")
    b.flush_stubs()
    assert kb.spec_n == n0 + 3
    a.stubs += b.lines
    a.uid = b.uid
    a.maxv = max(a.maxv, b.maxv)

def p3(k):
    a = k.a
    SRP, SCB = 50, 51
    G, Z0, Z1, A0 = 8, 72, 104, 136
    XR = SPEC + 24576
    k.ids_g2(SRP, SCB)
    srd(a, R_A, P_X, 2097152)
    a(f"s_lshr_b32 s52, s{S_W}, 1")
    a(f"s_and_b32 s53, s{S_W}, 1")
    T = A0
    a(f"v_lshrrev_b32 v{T}, 3, v0")
    a(f"v_lshlrev_b32 v{T}, 16, v{T}")
    a(f"v_and_b32 v{T+1}, 7, v0")
    a(f"v_lshrrev_b32 v{T+2}, 4, v0")
    a(f"v_xor_b32 v{T+1}, v{T+1}, v{T+2}")
    a(f"v_lshl_add_u32 v{T}, v{T+1}, 4, v{T}")
    a(f"v_xor_b32 v{T+1}, 64, v{T}")
    a(f"s_lshl1_add_u32 s47, s{SRP}, s52")
    a("s_lshl_b32 s47, s47, 10")
    a(f"s_lshl_b32 s48, s{SCB}, 7")
    a("s_add_u32 s47, s47, s48")
    a("s_lshl_b32 s48, s53, 20")
    a("s_add_u32 s47, s47, s48")
    a(f"s_lshl_b32 s48, s{S_W}, 11")
    a(f"s_add_u32 m0, s48, {XR}")
    a(f"s_add_u32 s49, s47, {8*65536}")
    a(f"buffer_load_dwordx4 v{T}, s[{R_A}:{R_A+3}], s47 offen lds", tag="xr")
    a(f"s_add_u32 m0, s48, {XR + 1024}")
    a("s_nop 0")
    a(f"buffer_load_dwordx4 v{T+1}, s[{R_A}:{R_A+3}], s49 offen lds", tag="xr")
    a(f"v_bfe_u32 v{T+2}, v0, 2, 1")
    a(f"v_bfe_u32 v{T+3}, v0, 3, 2")
    a(f"v_and_b32 v{T+4}, 3, v0")
    a(f"v_lshl_add_u32 v{T+4}, v{T+3}, 2, v{T+4}")
    a(f"v_lshl_add_u32 v{T+4}, v{T+2}, 4, v{T+4}")
    a(f"v_lshrrev_b32 v{T+5}, 5, v0")
    a(f"v_lshlrev_b32 v{T+5}, 2, v{T+5}")
    a(f"s_lshl_b32 s47, s{S_W}, 6")
    a(f"v_add_u32 v{T+5}, s47, v{T+5}")
    a(f"v_cmp_eq_u32 s[56:57], 0, v{T+5}")
    a(f"v_cvt_f32_u32 v{T+6}, v{T+5}")
    a(f"v_and_b32 v{T+7}, 1, v0")
    a(f"v_lshlrev_b32 v{T+7}, 31, v{T+7}")
    a(f"v_xor_b32 v{T+7}, 0xbf003f00, v{T+7}")
    for cc in range(2):
        a(f"s_xor_b32 s47, s53, {cc}")
        a(f"s_lshl1_add_u32 s47, s{SCB}, s47")
        a("s_lshl_b32 s47, s47, 5")
        a(f"v_add_u32 v{T+8}, s47, v{T+4}")
        a(f"v_cvt_f32_u32 v{T+8}, v{T+8}")
        a(f"v_mul_f32 v{T+8}, {fl(1/512)}, v{T+8}")
        a(f"v_mul_f32 v{T+9}, v{T+8}, v{T+6}")
        a(f"v_fract_f32 v{T+9}, v{T+9}")
        gen_pairs(a, G + 32*cc, 32, T + 9, T + 8, lambda i: 8*(i >> 2) + (i & 3), T + 10)
        a(f"v_cndmask_b32 v{G+32*cc}, v{G+32*cc}, v{T+7}, s[56:57]")
    a(f"v_lshlrev_b32 v5, 13, v{T+5}")
    a(f"v_and_b32 v{T}, 31, v0")
    a(f"v_lshl_add_u32 v5, v{T}, 2, v5")
    a(f"s_lshl1_add_u32 s47, s{SRP}, s52")
    a("s_lshl_b32 s47, s47, 7")
    a(f"s_add_u32 s47, s47, {WS_Z}")
    a("v_add_u32 v5, s47, v5")
    a("v_xor_b32 v6, 0x80, v5")
    a(f"s_lshr_b32 s47, s{SRP}, 3")
    a("s_lshl_b32 s47, s47, 10")
    a(f"s_lshl_b32 s48, s{S_W}, 8")
    a("s_add_u32 s47, s47, s48")
    a(f"s_add_u32 s47, s47, {F2_OFF}")
    a("v_lshlrev_b32 v7, 2, v0")
    a("v_add_u32 v7, s47, v7")
    k.stamp()
    k.glb_wait(V_T, 7)
    k.stamp()
    for ul, Z in ((0, Z0), (1, Z1)):
        for i in range(32):
            if ul == 1 and i == 28: break
            a(f"s_mov_b32 s47, {(8*(i >> 2) + (i & 3))*8192}")
            a(f"buffer_load_dword v{Z+i}, v{5+ul}, s[{R_WS}:{R_WS+3}], s47 offen{k.sc}")
    for ul, Z, A in ((0, Z0, A0), (1, Z1, Z0)):
        for t in range(8):
            for cc in range(2):
                acc = A + 16*cc
                a(f"v_mfma_f32_32x32x16_bf16 {vr(acc, 16)}, {vr(G+32*cc+4*t, 4)}, {vr(Z+4*t, 4)}, {'0' if t == 0 else vr(acc, 16)}")
            if ul == 0 and t == 1:
                for i in range(28, 32):
                    a(f"s_mov_b32 s47, {(8*(i >> 2) + (i & 3))*8192}")
                    a(f"buffer_load_dword v{Z1+i}, v6, s[{R_WS}:{R_WS+3}], s47 offen{k.sc}")
    if k.cfg.fused: spec_sync(k)
    a("v_lshlrev_b32 v5, 4, v0")
    for lam, src in ((1, A0 + 16), (2, Z0), (3, Z0 + 16)):
        o = G + 8*lam
        for i in range(8): a(f"v_cvt_pk_bf16_f32 v{o+i}, v{src+2*i}, v{src+2*i+1}")
        a(f"s_xor_b32 s47, s{S_W}, {lam}")
        a("s_mul_i32 s47, s47, 6144")
        a(f"s_add_u32 s47, s47, {SPEC + (lam - 1)*2048}")
        a("v_add_u32 v6, s47, v5")
        a(f"ds_write_b128 v6, {vr(o, 4)}")
        a(f"ds_write_b128 v6, {vr(o+4, 4)} offset:1024")
    a.wait_tag("xr")
    spec_sync(k)
    a(f"s_mul_i32 s47, s{S_W}, 6144")
    a(f"s_add_u32 s47, s47, {SPEC}")
    a("v_add_u32 v6, s47, v5")
    for i in range(6): a(f"ds_read_b128 {vr(G+4*i, 4)}, v6 offset:{i*1024}")
    a("v_and_b32 v7, 31, v0")
    a(f"v_lshrrev_b32 v{G+32}, 5, v0")
    a(f"v_lshlrev_b32 v{G+32}, 1, v{G+32}")
    a("s_lshl_b32 s47, s53, 2")
    a(f"v_add_u32 v{G+32}, s47, v{G+32}")
    a(f"v_bfe_u32 v{G+33}, v0, 1, 3")
    a(f"v_xor_b32 v{G+32}, v{G+32}, v{G+33}")
    a("v_lshlrev_b32 v7, 7, v7")
    a(f"v_lshl_add_u32 v7, v{G+32}, 4, v7")
    a(f"v_xor_b32 v{G+33}, 16, v7")
    a("s_lshl_b32 s47, s52, 12")
    a(f"s_add_u32 s47, s47, {XR}")
    a("v_add_u32 v7, s47, v7")
    a(f"v_add_u32 v{G+33}, s47, v{G+33}")
    a(f"ds_read_b128 {vr(G+24, 4)}, v7")
    a(f"ds_read_b128 {vr(G+28, 4)}, v{G+33}")
    for s in range(4):
        for i in range(8):
            src = G + 8*s + i
            a(f"v_lshlrev_b32 v{G+36}, 16, v{src}")
            a(f"v_and_b32 v{G+37}, 0xffff0000, v{src}")
            a(f"v_pk_add_f32 {vr(A0+2*i, 2)}, {vr(A0+2*i, 2)}, {vr(G+36, 2)}")
    for i in range(4): a(f"ds_write_b128 v6, {vr(A0+4*i, 4)} offset:{i*1024}")
    a(f"s_lshl_b32 s47, s{S_W}, 2")
    a(f"s_add_u32 s47, s47, {SY_Y}")
    a("v_mov_b32 v7, s47")
    k.lds_post(V_T, 7, 1)
    if k.cfg.fused:
        sk = a.label("ep")
        a(f"s_lshl_b32 s47, s2, 2")
        a(f"s_or_b32 s47, s47, s{S_W}")
        a("s_cmp_lg_u32 s47, 0")
        a(f"s_cbranch_scc1 {sk}")
        a(f"s_mov_b32 s47, {EPOCH_OFF}")
        k.glb_post(10, 47)
        a.place(sk)
    k.stamp()

def prologue(a, name):
    a.raw(f".globl {name}\n.p2align 8\n.type {name},@function\n{name}:")
    a.reset()
    end = a.label("end")
    a("s_cmp_ge_u32 s2, 0x100")
    a(f"s_cbranch_scc1 {end}")
    a("s_load_dwordx16 s[64:79], s[0:1], 0")
    a("s_load_dwordx4 s[80:83], s[0:1], 64")
    a("v_lshrrev_b32 v1, 6, v0")
    a("v_and_b32 v0, 63, v0")
    a(f"v_readfirstlane_b32 s{S_WAVE}, v1")
    a(f"s_and_b32 s{S_XCD}, s2, 7")
    a(f"s_lshr_b32 s{S_IDX}, s2, 3")
    a(f"s_and_b32 s{S_W}, s{S_WAVE}, 3")
    a(f"s_lshr_b32 s{S_ROLE}, s{S_WAVE}, 2")
    return end

def g15_test(k, target):
    a = k.a
    a("s_or_b32 s47, s2, 0x39")
    a("s_cmp_eq_u32 s47, 0xff")
    a(f"s_cbranch_scc1 {target}")

def build_kernel(a, cfg, name, kid, phases):
    k = K(a, cfg, kid)
    end = prologue(a, name)
    k.stamp()
    first = k.nst
    l_spec, l_comp, l_rs, l_cs = a.label("spec"), a.label("comp"), a.label("rs"), a.label("cs")
    a.wait(lg=0)
    a(f"s_cmp_eq_u32 s{S_ROLE}, 1"); a(f"s_cbranch_scc1 {l_spec}")
    a(f"s_cmp_eq_u32 s{S_ROLE}, 2"); a(f"s_cbranch_scc1 {l_comp}")
    a(f"s_cmp_eq_u32 s{S_W}, 2"); a(f"s_cbranch_scc1 {l_rs}")
    a(f"s_cmp_eq_u32 s{S_W}, 3"); a(f"s_cbranch_scc1 {l_cs}")
    def finish():
        k.stamps_out()
        a("s_endpgm")
        a.flush_stubs()
        a.reset(); k.nst = first
    if 1 in phases or 3 in phases:
        if cfg.prio: a("s_setprio 3")
        loader_sync_setup(k)
        if 1 in phases:
            skip = a.label("lskip")
            g15_test(k, skip)
            loader_g1(k)
            if 3 in phases:
                loader_g2(k, True, False)
            else:
                a.wait(vm=0); k.lds_post(9, 7, 8)
            finish()
            a.place(skip)
            if 3 in phases: loader_g2(k, False, True)
        else:
            loader_g2(k, False, True)
    finish()
    for lab, fn, slot in ((l_rs, rowstat, 16), (l_cs, colsum, 20)):
        a.place(lab)
        skip = a.label("sskip")
        if 1 in phases:
            g15_test(k, skip)
            fn(k)
            finish()
        a.place(skip)
        if 3 in phases:
            a("s_barrier")
            a(f"v_mov_b32 v8, {SY_FREE + slot}")
            k.lds_post(9, 8, 64)
        finish()
    a.place(l_spec)
    if cfg.prio: a("s_setprio 2")
    spec_setup(k)
    if 1 in phases: p1(k)
    else: a("s_barrier")
    if 2 in phases: p2(k)
    if 3 in phases: p3(k)
    finish()
    a.place(l_comp)
    k.nonce_load()
    zero_sync_area(k)
    compute_sync_setup(k)
    a.wait(lg=0)
    k.nonce_finish()
    a("s_barrier")
    if 1 in phases:
        skip = a.label("cskip")
        g15_test(k, skip)
        compute_g1(k)
        a.wait(lg=0)
        if not cfg.fused: a.wait(vm=0)
        a.place(skip)
        a.nop(2)
    if 3 in phases: compute_g2(k)
    finish()
    a.place(end)
    a("s_endpgm")

def descriptor(name, vg, sg):
    return f""".p2align 6
.amdhsa_kernel {name}
  .amdhsa_next_free_vgpr {vg}
  .amdhsa_next_free_sgpr {sg}
  .amdhsa_accum_offset {vg}
  .amdhsa_group_segment_fixed_size 0
  .amdhsa_kernarg_size 80
  .amdhsa_user_sgpr_count 2
  .amdhsa_user_sgpr_kernarg_segment_ptr 1
  .amdhsa_system_sgpr_workgroup_id_x 1
.end_amdhsa_kernel
"""

def generate(cfg, mode):
    a = Asm()
    if mode == "s3": ks = [("ph1_kernel", {1}), ("ph2_kernel", {2}), ("ph3_kernel", {3})]
    elif mode == "s1": ks = [(NAME + "_kernel", {1, 2, 3})]
    hdr = ""
    for n, _ in ks:
        hdr += f"; @launch kernel={n} grid=(256,1,1) block=(768,1,1) lds={LDS_TOTAL}\n"
    hdr += '.amdgcn_target "amdgcn-amd-amdhsa--gfx950"\n.text\n'
    for i, (n, ph) in enumerate(ks): build_kernel(a, cfg, n, i, ph)
    assert a.maxv < 168, a.maxv
    out = hdr + a.text() + '.section .rodata,"a"\n'
    for n, _ in ks: out += descriptor(n, 168, 102)
    return out

if __name__ == "__main__":
    mode, path = sys.argv[1], sys.argv[2]
    cfg = Cfg()
    cfg.fused = (mode == "s1")
    for o in sys.argv[3:]:
        key, val = o.split("=")
        setattr(cfg, key, int(val))
    open(path, "w").write(generate(cfg, mode))
```

```python
import sys
def desc(name, vg=256, sg=96, acc=256):
    return f""".p2align 6
.amdhsa_kernel {name}
  .amdhsa_next_free_vgpr {vg}
  .amdhsa_next_free_sgpr {sg}
  .amdhsa_accum_offset {acc}
  .amdhsa_group_segment_fixed_size 0
  .amdhsa_kernarg_size 80
  .amdhsa_user_sgpr_count 2
  .amdhsa_user_sgpr_kernarg_segment_ptr 1
  .amdhsa_system_sgpr_workgroup_id_x 1
.end_amdhsa_kernel
"""
def srd(d, b, n):
    return f"    s_mov_b32 s{d}, s{b}\n    s_mov_b32 s{d+1}, s{b+1}\n    s_mov_b32 s{d+2}, {n}\n    s_mov_b32 s{d+3}, 0x00020000\n"

def gen(fn, xmode="strided", wmode="tile", xcd=True, rot=True, do_x=True, npairs=3, w2=False):
    s = "; @launch kernel=t_kernel grid=(256,1,1) block=(256,1,1) lds=163840\n"
    s += '.amdgcn_target "amdgcn-amd-amdhsa--gfx950"\n.text\n.globl t_kernel\n.p2align 8\n.type t_kernel,@function\nt_kernel:\n'
    s += """
    s_memtime s[40:41]
    s_load_dwordx2 s[4:5], s[0:1], 0
    s_load_dwordx4 s[8:11], s[0:1], 32
    s_load_dwordx2 s[12:13], s[0:1], 48
    s_load_dwordx2 s[6:7], s[0:1], 72
    s_waitcnt lgkmcnt(0)
"""
    s += srd(16, 4, 2097152) + srd(20, 8, 1409024) + srd(24, 10, 1409024) + srd(28, 6, 0x100000) + srd(32, 12, 1409024)
    if xcd:
        s += "    s_and_b32 s50, s2, 7\n    s_lshl_b32 s50, s50, 1\n    s_lshr_b32 s52, s2, 3\n    s_and_b32 s52, s52, 1\n    s_or_b32 s50, s50, s52\n    s_lshr_b32 s51, s2, 4\n"
    else:
        s += "    s_lshr_b32 s50, s2, 4\n    s_and_b32 s51, s2, 15\n"
    s += "    v_lshrrev_b32 v1, 6, v0\n    s_nop 0\n    v_readfirstlane_b32 s53, v1\n    v_and_b32 v2, 63, v0\n"
    s += "    v_and_b32 v3, 31, v2\n    v_lshrrev_b32 v4, 5, v2\n"
    if xmode == "strided":
        s += "    s_lshl_b32 s54, s50, 2\n    s_add_u32 s54, s54, s53\n    s_lshl_b32 s54, s54, 10\n    v_lshlrev_b32 v5, 16, v3\n"
    else:
        s += "    s_lshl_b32 s54, s50, 2\n    s_add_u32 s54, s54, s53\n    s_lshl_b32 s54, s54, 15\n    v_lshlrev_b32 v5, 10, v3\n"
    s += "    v_lshl_add_u32 v5, v4, 4, v5\n    v_add_u32 v5, s54, v5\n"
    for b in range(8):
        if rot:
            s += f"    s_add_u32 s{60+b}, s51, {b}\n    s_and_b32 s{60+b}, s{60+b}, 7\n"
        else:
            s += f"    s_mov_b32 s{60+b}, {b}\n"
        s += f"    s_mul_i32 s{70+b}, s{60+b}, {64*2752}\n    s_lshl_b32 s{60+b}, s{60+b}, 7\n"
    s += "    v_lshrrev_b32 v6, 2, v2\n    s_lshl_b32 s55, s53, 4\n    v_add_u32 v6, s55, v6\n    s_movk_i32 s56, 2752\n    v_mul_lo_u32 v6, v6, s56\n"
    s += "    v_and_b32 v7, 3, v2\n    v_lshl_add_u32 v6, v7, 4, v6\n    s_mul_i32 s57, s51, 192\n    s_min_u32 s57, s57, 2560\n    v_add_u32 v6, s57, v6\n"
    s += "    s_lshl_b32 s58, s53, 10\n"
    def xload(t):
        return f"    buffer_load_dwordx4 v[{64+4*t}:{67+4*t}], v5, s[16:19], s{60+t//4} offen offset:{(t%4)*32}\n"
    slot = [0]
    def wload(p, b, which):
        r = 20 if which == 0 else 24
        m = (slot[0] % 40) * 4096
        slot[0] += 1
        return (f"    s_add_u32 m0, s58, {m}\n    v_add_u32 v8, {p*64}, v6\n"
                f"    buffer_load_dwordx4 v8, s[{r}:{r+3}], s{70+b} offen lds\n")
    body = ""
    if wmode == "tile":
        for b in range(8):
            if do_x:
                for t in range(4): body += xload(4*b+t)
            if npairs > 0:
                body += wload(0, b, 0) + wload(0, b, 1)
        body += "    s_waitcnt vmcnt(0)\n    s_memtime s[42:43]\n" if False else ""
        for p in range(1, npairs):
            for b in range(8):
                body += wload(p, b, 0) + wload(p, b, 1)
    elif wmode == "kouter":
        for b in range(8):
            if do_x:
                for t in range(4): body += xload(4*b+t)
            for p in range(npairs):
                body += wload(p, b, 0)
            for p in range(npairs):
                body += wload(p, b, 1)
    if w2:
        body += "    v_lshrrev_b32 v9, 2, v2\n    v_add_u32 v9, s55, v9\n    v_lshlrev_b32 v9, 10, v9\n    v_lshl_add_u32 v9, v7, 4, v9\n    s_and_b32 s59, s51, 7\n    s_lshl_b32 s59, s59, 6\n    v_add_u32 v9, s59, v9\n"
        for i in range(22):
            for hf in range(2):
                m = (slot[0] % 40) * 4096; slot[0] += 1
                body += f"    s_add_u32 m0, s58, {m}\n    v_add_u32 v8, {i*65536+hf*512}, v9\n    buffer_load_dwordx4 v8, s[32:35], 0 offen lds\n"
    s += "    s_memtime s[42:43]\n" + body + "    s_memtime s[44:45]\n    s_waitcnt vmcnt(0)\n    s_memtime s[46:47]\n    s_waitcnt lgkmcnt(0)\n"
    s += """
    s_sub_u32 s42, s42, s40
    s_sub_u32 s44, s44, s40
    s_sub_u32 s46, s46, s40
    v_mov_b32 v10, s42
    v_mov_b32 v11, s44
    v_mov_b32 v12, s46
    v_mov_b32 v13, 0
    s_lshl_b32 s3, s2, 8
    v_add_u32 v1, s3, v0
    v_lshlrev_b32 v1, 4, v1
    buffer_store_dwordx4 v[10:13], v1, s[28:31], 0 offen
    s_waitcnt vmcnt(0)
    s_endpgm
"""
    s += '.section .rodata,"a"\n' + desc("t_kernel")
    open(fn, "w").write(s)

if __name__ == "__main__": gen("ld_x_str.s", npairs=0)
if __name__ == "__main__": gen("ld_x_str_norot.s", npairs=0, rot=False)
if __name__ == "__main__": gen("ld_x_lin.s", npairs=0, xmode="lin")
if __name__ == "__main__": gen("ld_w_tile.s", do_x=False)
if __name__ == "__main__": gen("ld_w_kout.s", do_x=False, wmode="kouter")
if __name__ == "__main__": gen("ld_all_tile.s")
if __name__ == "__main__": gen("ld_all_kout.s", wmode="kouter")
if __name__ == "__main__": gen("ld_all_tile_noxcd.s", xcd=False)
if __name__ == "__main__": gen("ld_all_tile_w2.s", w2=True)
if __name__ == "__main__": gen("ld_w2.s", w2=True, do_x=False, npairs=0)
```

```python
from gen_load import desc, srd
def gen(fn, shape, n, duty=0, rnd=True, order=0, agpr=False):
    s = "; @launch kernel=t_kernel grid=(256,1,1) block=(256,1,1) lds=0\n"
    s += '.amdgcn_target "amdgcn-amd-amdhsa--gfx950"\n.text\n.globl t_kernel\n.p2align 8\n.type t_kernel,@function\nt_kernel:\n'
    s += "    s_load_dwordx2 s[4:5], s[0:1], 0\n    s_load_dwordx2 s[6:7], s[0:1], 72\n    s_waitcnt lgkmcnt(0)\n"
    s += srd(16, 4, 2097152) + srd(28, 6, 0x100000)
    s += "    v_lshlrev_b32 v1, 4, v0\n"
    for i in range(10):
        if rnd: s += f"    s_mov_b32 s20, {i*4096}\n    buffer_load_dwordx4 v[{100+4*i}:{103+4*i}], v1, s[16:19], s20 offen\n"
        else:
            for j in range(4): s += f"    v_mov_b32 v{100+4*i+j}, 0\n"
    for i in range(96): s += f"    v_mov_b32 v{4+i}, 0\n"
    s += "    s_waitcnt vmcnt(0)\n    s_memtime s[12:13]\n    s_memrealtime s[22:23]\n    s_waitcnt lgkmcnt(0)\n    s_mov_b32 s20, 0\nL0:\n"
    if shape == 32:
        for st in range(2):
            seq = [[(T, s) for T in range(3) for s in range(2)], [(T, s) for s in range(2) for T in range(3)],
                   [(0,0),(0,1),(1,1),(1,0),(2,0),(2,1)], [(0,0),(1,1),(2,0),(0,1),(1,0),(2,1)]][order]
            for T, sub in seq:
                if True:
                    acc = 4 + 16*(2*T+sub)
                    a = 100 + 20*st + 8 + 4*T; b = 100 + 20*st + 4*sub
                    s += f"    v_mfma_f32_32x32x16_bf16 v[{acc}:{acc+15}], v[{a}:{a+3}], v[{b}:{b+3}], v[{acc}:{acc+15}]\n"
    else:
        for T in range(6):
            for sub in range(4):
                acc = 4 + 4*(4*T+sub)
                a = 100 + 16 + 4*T; b = 100 + 4*sub
                s += f"    v_mfma_f32_16x16x32_bf16 v[{acc}:{acc+3}], v[{a}:{a+3}], v[{b}:{b+3}], v[{acc}:{acc+3}]\n"
    if duty: s += f"    s_sleep {duty}\n"
    s += f"    s_add_u32 s20, s20, 1\n    s_cmp_lt_u32 s20, {n}\n    s_cbranch_scc1 L0\n"
    s += """
    s_memtime s[14:15]
    s_memrealtime s[24:25]
    s_waitcnt lgkmcnt(0)
    s_sub_u32 s16, s14, s12
    s_sub_u32 s17, s24, s22
    v_mov_b32 v2, s16
    v_mov_b32 v3, s17
    s_lshl_b32 s3, s2, 3
    v_mov_b32 v1, s3
    buffer_store_dwordx2 v[2:3], v1, s[28:31], 0 offen
    s_waitcnt vmcnt(0)
    s_endpgm
"""
    s += '.section .rodata,"a"\n' + desc("t_kernel", vg=160, acc=160)
    open(fn, "w").write(s)

for o in range(4): gen(f"co{o}.s", 32, 32, order=o)
```
